```python
import torch

def _softmax(x, axis=-1):
    return torch.softmax(x, dim=axis)
def _gelu(x):
    return torch.nn.functional.gelu(x, approximate="tanh")
def _silu(x):
    return torch.nn.functional.silu(x)
def _sigmoid(x):
    return torch.sigmoid(x)
def _layernorm(x, axis=-1, eps=1e-5):
    m = x.mean(dim=axis, keepdim=True)
    v = x.var(dim=axis, keepdim=True, unbiased=False)
    return (x - m) / torch.sqrt(v + eps)
def _scatter_add(tgt, idx, src, axis=0):
    return tgt.clone().index_add_(axis, idx, src)
def _segment_sum(src, seg, n):
    out = torch.zeros((n,) + src.shape[1:], dtype=src.dtype)
    return out.index_add_(0, seg, src)
def _pad(x, pw):
    flat = tuple(v for pair in reversed(pw) for v in pair)
    return torch.nn.functional.pad(x, flat)

kernel_name = 'concat_heads__gqa_block_cached__gqa_block_cached__near_ridge'

def setup_inputs():

    _w = (lambda a: (lambda t: t.to(torch.bfloat16) if t.is_floating_point() else t)(torch.as_tensor(a)))
    def _A_setup():
        B, Sq, D = 16, 32, 1024
        Hq, Hkv, Sk, Dh = 32, 4, 32, 128
        assert Hq % Hkv == 0, (Hq, Hkv)
        return {
            "x": _w((lambda *s: torch.randn(*s, dtype=torch.bfloat16) * 0.8)(B, Sq, D)),
            "k_cache": _w((lambda *s: torch.randn(*s, dtype=torch.bfloat16) * 0.8)(B, Hkv, Sk, Dh)),
            "v_cache": _w((lambda *s: torch.randn(*s, dtype=torch.bfloat16) * 0.05)(B, Hkv, Sk, Dh)),
            "wq": _w((lambda *s: torch.randn(*s, dtype=torch.bfloat16) * 0.8)(D, Hq * Dh) * (D ** -0.5)),
            "wo": _w((lambda *s: torch.randn(*s, dtype=torch.bfloat16) * 0.05)(Hq * Dh, D) * ((Hq * Dh) ** -0.5)),
        }
    _A_in = _A_setup()

    def _B_setup():
        B, Sq, D = 16, 32, 1024
        Hq, Hkv, Sk, Dh = 32, 4, 32, 128
        assert Hq % Hkv == 0, (Hq, Hkv)
        return {
            "x": _w((lambda *s: torch.randn(*s, dtype=torch.bfloat16) * 0.8)(B, Sq, D)),
            "k_cache": _w((lambda *s: torch.randn(*s, dtype=torch.bfloat16) * 0.8)(B, Hkv, Sk, Dh)),
            "v_cache": _w((lambda *s: torch.randn(*s, dtype=torch.bfloat16) * 0.05)(B, Hkv, Sk, Dh)),
            "wq": _w((lambda *s: torch.randn(*s, dtype=torch.bfloat16) * 0.8)(D, Hq * Dh) * (D ** -0.5)),
            "wo": _w((lambda *s: torch.randn(*s, dtype=torch.bfloat16) * 0.05)(Hq * Dh, D) * ((Hq * Dh) ** -0.5)),
        }
    _B_in = _B_setup()

    return {
        "A_x": _A_in["x"],
        "A_k_cache": _A_in["k_cache"],
        "A_v_cache": _A_in["v_cache"],
        "A_wq": _A_in["wq"],
        "A_wo": _A_in["wo"],
        "B_x": _B_in["x"],
        "B_k_cache": _B_in["k_cache"],
        "B_v_cache": _B_in["v_cache"],
        "B_wq": _B_in["wq"],
        "B_wo": _B_in["wo"],
    }

def reference(A_x, A_k_cache, A_v_cache, A_wq, A_wo, B_x, B_k_cache, B_v_cache, B_wq, B_wo):
    def _A_ref(x, k_cache, v_cache, wq, wo):
        B, Sq, D = x.shape
        Hq, Dh = 32, 128
        Hkv = k_cache.shape[1]
        rep = Hq // Hkv
        q = (lambda x, *d: x.permute(*d))((x @ wq).reshape(B, Sq, Hq, Dh), 0, 2, 1, 3)
        k = (lambda x, n, axis: torch.repeat_interleave(x, n, dim=axis))(k_cache, rep, axis=1)
        v = (lambda x, n, axis: torch.repeat_interleave(x, n, dim=axis))(v_cache, rep, axis=1)
        scores = torch.einsum("bhqd,bhkd->bhqk", q, k) * (Dh ** -0.5)
        p = _softmax(scores, axis=-1)
        o = torch.einsum("bhqk,bhkd->bhqd", p, v)
        return (lambda x, *d: x.permute(*d))(o, 0, 2, 1, 3).reshape(B, Sq, Hq * Dh) @ wo

    def _B_ref(x, k_cache, v_cache, wq, wo):
        B, Sq, D = x.shape
        Hq, Dh = 32, 128
        Hkv = k_cache.shape[1]
        rep = Hq // Hkv
        q = (lambda x, *d: x.permute(*d))((x @ wq).reshape(B, Sq, Hq, Dh), 0, 2, 1, 3)
        k = (lambda x, n, axis: torch.repeat_interleave(x, n, dim=axis))(k_cache, rep, axis=1)
        v = (lambda x, n, axis: torch.repeat_interleave(x, n, dim=axis))(v_cache, rep, axis=1)
        scores = torch.einsum("bhqd,bhkd->bhqk", q, k) * (Dh ** -0.5)
        p = _softmax(scores, axis=-1)
        o = torch.einsum("bhqk,bhkd->bhqd", p, v)
        return (lambda x, *d: x.permute(*d))(o, 0, 2, 1, 3).reshape(B, Sq, Hq * Dh) @ wo

    a = _A_ref(A_x, A_k_cache, A_v_cache, A_wq, A_wo)
    b = _B_ref(B_x, B_k_cache, B_v_cache, B_wq, B_wo)
    return torch.concatenate([a, b], axis=-1)
```

```python
import re, sys
NAME = "concat_heads__gqa_block_cached__gqa_block_cached__near_ridge"
OPT = dict(stamp=0, nslots=10, pollstep=9, maxissue=2)
for a in sys.argv[2:]:
    k, v = a.split("="); OPT[k] = int(v)
AREA = 40960

def regs(tok):
    tok = tok.strip()
    m = re.fullmatch(r"-?([va])\[(\d+):(\d+)\]", tok)
    if m: return [m.group(1) + str(i) for i in range(int(m.group(2)), int(m.group(3)) + 1)]
    m = re.fullmatch(r"-?([va])(\d+)", tok)
    if m: return [m.group(1) + m.group(2)]
    return []

class Gen:
    def __init__(s):
        s.out = []; s.ws = 0
        s.mf_w = {}; s.va_w = {}; s.mf_c = {}; s.tr_w = {}; s.st_r = {}
        s.vm = 0
        s.free = list(range(OPT['nslots'])); s.slot = {}; s.last = {}
        s.pend_lds = set()
    def raw(s, t): s.out.append(t)
    def e(s, t):
        op = t.split()[0]
        ops = [x.strip() for x in t[len(op):].split(",")]
        ops = [o.split()[0] if o else o for o in ops]
        need = 0
        def chk(tab, rs, n):
            nonlocal need
            for r in rs:
                if r in tab: need = max(need, n - (s.ws - tab[r]))
        if op.startswith("v_mfma"):
            d, a, b, c = regs(ops[0]), regs(ops[1]), regs(ops[2]), regs(ops[3])
            chk(s.va_w, a + b + c, 2); chk(s.mf_w, a + b, 12)
            if c != d: chk(s.mf_w, c + d, 12)
            rd, wr = a + b + c, d
        elif op.startswith("v_"):
            wr = regs(ops[0]); rd = sum((regs(o) for o in ops[1:]), [])
            if op.startswith("v_fmac") or op.startswith("v_permlane"): rd += wr
            if op.startswith("v_permlane"): wr = wr + regs(ops[1]); chk(s.va_w, rd, 2)
            if op.startswith("v_readfirstlane"): chk(s.va_w, rd, 1)
            chk(s.mf_w, rd + wr, 12); chk(s.mf_c, wr, 7); chk(s.st_r, wr, 2)
            if not re.match(r"v_(exp|rcp|log)", op): chk(s.tr_w, rd, 1)
        elif op.startswith("ds_read") or (op.startswith("buffer_load") and " lds" not in t):
            wr = regs(ops[0]); rd = regs(ops[1]); chk(s.mf_w, rd + wr, 12); chk(s.st_r, wr, 1)
        elif op.startswith("ds_write") or op.startswith("buffer_"):
            wr = []; rd = sum((regs(o) for o in ops[:2]), []); chk(s.mf_w, rd, 12)
        else: rd, wr = [], []
        for r in rd + wr:
            assert r not in s.pend_lds or op.startswith("ds_read") and r not in rd and False, ("unwaited lds reg", t)
        if need > 0:
            s.out.append(f"    s_nop {need-1}"); s.ws += need
            if OPT.get('verbose'): print("nop", need, "before", t, file=sys.stderr)
        s.out.append("    " + t); s.ws += 1
        if op == "s_nop": s.ws += int(ops[0])
        if op.startswith("v_mfma"):
            for r in wr: s.mf_w[r] = s.ws
            for r in regs(ops[3]): s.mf_c[r] = s.ws
        elif op.startswith("v_"):
            for r in wr:
                s.va_w[r] = s.ws; s.mf_w.pop(r, None)
                if re.match(r"v_(exp|rcp|log)", op): s.tr_w[r] = s.ws
                else: s.tr_w.pop(r, None)
        if op.startswith("ds_read"): s.pend_lds |= set(wr)
        if op.startswith("s_waitcnt") and "lgkmcnt(0)" in t: s.pend_lds = set()
        if op.startswith("buffer_store"):
            for r in regs(ops[0]): s.st_r[r] = s.ws
        if op.startswith("buffer_"): s.vm += 1
    def run(s, f):
        if callable(f): f()
        else: s.e(f)
g = Gen(); e = g.e

stream = [("X",0,0),("W",0),("X",0,1),("X",0,2),("X",0,3)]
for st in range(15):
    stream.append(("W", st+1))
    if st < 12: stream.append(("X", st//4+1, st%4))
    else: stream.append(("V", (st-12)//2, st%2))
    if st == 11: stream += [("K",0),("K",1)]
stream += [("V",1,1)]
stream += [("O",i) for i in range(32)] + [("P",i) for i in range(8)]
nxt = [0]; gate = {"P": False}
SOFF = "s80"
def item_ops(it):
    k = it[0]
    def head():
        sl = g.free.pop(0); g.slot[it] = sl
        e(f"s_add_u32 m0, s70, {sl*4096}")
        if k == "X": e(f"s_add_u32 {SOFF}, s{72+it[2]}, {it[1]*128}")
        elif k == "W": e(f"s_mov_b32 {SOFF}, {it[1]*16*8192}")
        elif k == "K": e(f"s_add_u32 {SOFF}, s76, {it[1]*128}")
        elif k == "V": e(f"s_add_u32 {SOFF}, s{77+it[1]}, {it[2]*128}")
        elif k == "O": e(f"s_mov_b32 {SOFF}, {it[1]*32*2048}")
        elif k == "P": e(f"s_mov_b32 {SOFF}, {it[1]*4096}")
    vb, srd = dict(X=(1,8), W=(5,12), K=(9,16), V=(9,20), O=(13,24), P=(17,28))[k]
    def dma(i):
        def f():
            if i == 0: head()
            v = vb if k == "P" else vb + i
            fl = " sc1" if k == "P" else ""
            e(f"buffer_load_dwordx4 v{v}, s[{srd}:{srd+3}], {SOFF} offen offset:{i*1024}{fl} lds")
            g.last[it] = g.vm
        return f
    return [dma(i) for i in range(4)]
def issue(n, reserve=0):
    r = []; avail = len(g.free) - reserve
    while n > 0 and avail > 0 and nxt[0] < len(stream):
        it = stream[nxt[0]]
        if it[0] == "P" and not gate["P"]: break
        r += item_ops(it); nxt[0] += 1; n -= 1; avail -= 1
    return r
def wait(*its):
    def f():
        n = min(g.vm - g.last[it] for it in its)
        e(f"s_waitcnt vmcnt({min(n,63)})")
    return f
def rel(*its):
    for it in its: g.free.append(g.slot.pop(it))
def A(b, n=4): return f"a[{b}:{b+n-1}]"
def V(b, n=4): return f"v[{b}:{b+n-1}]"
def lazy(fn): return lambda: e(fn())
def rdX(it, dst, addr=18):
    return [lazy(lambda ks=ks: f"ds_read_b128 {A(dst+4*ks)}, v{addr+ks} offset:{g.slot[it]*4096}") for ks in range(4)]
def rdW(it, dst):
    return [lazy(lambda t=t, rd=rd: f"ds_read_b64_tr_b16 {A(dst+4*t+2*rd,2)}, v{22+t} offset:{g.slot[it]*4096+rd*1024}")
            for t in range(4) for rd in range(2)]
def rdO(it, dst):
    return [lazy(lambda k=k, nt=nt, rd=rd: f"ds_read_b64_tr_b16 {A(dst+8*k+4*nt+2*rd,2)}, v{26+nt} offset:{g.slot[it]*4096+k*2048+rd*512}")
            for k in range(2) for nt in range(2) for rd in range(2)]
def rdP(it, dst):
    return [lazy(lambda b=b, m=m: f"ds_read_b128 {A(dst+8*b+4*m)}, v{18+b} offset:{g.slot[it]*4096+m*1024}")
            for b in range(2) for m in range(2)]
def spread(lst, lo, hi, n):
    r = [[] for _ in range(n)]
    for i, f in enumerate(lst): r[lo + i * (hi - lo) // len(lst)].append(f)
    return r
def block(mf, *plans):
    for i, m in enumerate(mf):
        e(m)
        for p in plans:
            for f in p[i]: g.run(f)
def mfma(d, a, b, first): return f"v_mfma_f32_32x32x16_bf16 {d}, {a}, {b}, {'0' if first else d}"
nst = [0]
def stamp():
    if OPT['stamp']:
        e(f"s_memtime s[{84+2*nst[0]}:{85+2*nst[0]}]"); nst[0] += 1

P = """
s_cmp_ge_u32 s2, 256
s_cbranch_scc1 L_end
s_load_dwordx16 s[36:51], s[0:1], 0
s_load_dwordx8 s[52:59], s[0:1], 64
s_load_dwordx2 s[60:61], s[0:1], 96
v_lshrrev_b32 v29, 6, v0
v_and_b32 v0, 63, v0
v_readfirstlane_b32 s68, v29
s_and_b32 s3, s2, 3
s_bfe_u32 s4, s2, 0x10002
s_lshr_b32 s5, s2, 3
s_and_b32 s6, s5, 7
s_lshl_b32 s7, s3, 3
s_add_u32 s6, s6, s7
s_lshr_b32 s7, s5, 3
s_and_b32 s62, s5, 3
s_lshl_b32 s63, s3, 2
s_add_u32 s62, s62, s63
s_lshr_b32 s63, s5, 2
s_mul_i32 s70, s68, 40960
v_lshrrev_b32 v29, 3, v0
v_and_b32 v30, 7, v0
v_lshrrev_b32 v31, 4, v0
v_xor_b32 v9, v30, v31
v_xor_b32 v10, 4, v9
v_lshlrev_b32 v9, 4, v9
v_lshlrev_b32 v10, 4, v10
s_lshl_b32 s81, s7, 18
s_lshl_b32 s82, s68, 9
s_add_u32 s81, s81, s82
v_lshl_add_u32 v1, v29, 11, s81
v_add_u32 v2, v1, v10
v_add_u32 v1, v1, v9
v_add_u32 v2, 15360, v2
v_add_u32 v3, 30720, v1
v_add_u32 v4, 30720, v2
v_and_b32 v5, 15, v0
v_lshlrev_b32 v6, 2, v31
v_xor_b32 v5, v5, v6
v_lshlrev_b32 v5, 4, v5
v_lshl_add_u32 v5, v31, 13, v5
s_lshl_b32 s81, s68, 21
s_lshl_b32 s82, s6, 8
s_add_u32 s81, s81, s82
v_add_u32 v5, s81, v5
v_add_u32 v6, 31744, v5
v_add_u32 v7, 63488, v5
v_add_u32 v8, 95232, v5
s_lshl_b32 s72, s68, 16
s_xor_b32 s73, s72, 0x10000
s_xor_b32 s74, s72, 0x20000
s_xor_b32 s75, s72, 0x30000
s_mov_b32 s10, 0x100000
s_mov_b32 s11, 0x20000
s_mov_b32 s14, 0x800000
s_mov_b32 s15, 0x20000
s_cmp_eq_u32 s4, 0
s_waitcnt lgkmcnt(0)
s_cselect_b32 s8, s36, s46
s_cselect_b32 s9, s37, s47
s_cselect_b32 s12, s42, s52
s_cselect_b32 s13, s43, s53
s_cselect_b32 s16, s38, s48
s_cselect_b32 s17, s39, s49
s_cselect_b32 s20, s40, s50
s_cselect_b32 s21, s41, s51
s_cselect_b32 s24, s44, s54
s_cselect_b32 s25, s45, s55
"""
for l in P.strip().split("\n"): e(l)
stamp()
for f in issue(99): g.run(f)
P2 = """
s_mov_b32 s18, 0x80000
s_mov_b32 s19, 0x20000
s_mov_b32 s22, 0x80000
s_mov_b32 s23, 0x20000
s_mov_b32 s26, 0x800000
s_mov_b32 s27, 0x20000
s_mov_b32 s28, s60
s_mov_b32 s29, s61
s_mov_b32 s30, 0x200000
s_mov_b32 s31, 0x20000
s_mov_b32 s32, s56
s_mov_b32 s33, s57
s_mov_b32 s34, 0x200000
s_mov_b32 s35, 0x20000
s_mov_b32 s64, s58
s_mov_b32 s65, s59
s_mov_b32 s66, 256
s_mov_b32 s67, 0x20000
v_and_b32 v13, 1, v31
v_lshlrev_b32 v13, 2, v13
v_xor_b32 v13, v13, v30
v_lshlrev_b32 v13, 4, v13
v_lshl_add_u32 v13, v29, 11, v13
s_lshl_b32 s81, s68, 21
s_lshl_b32 s82, s62, 7
s_add_u32 s81, s81, s82
v_add_u32 v13, s81, v13
v_add_u32 v14, 15360, v13
v_add_u32 v15, 30720, v13
v_add_u32 v16, 46080, v13
v_lshl_add_u32 v9, v29, 8, v9
v_lshl_add_u32 v10, v29, 8, v10
v_add_u32 v10, 1024, v10
v_add_u32 v11, 2048, v9
v_add_u32 v12, 2048, v10
s_lshl_b32 s76, s7, 2
s_add_u32 s76, s76, s68
s_lshl_b32 s76, s76, 15
s_lshl_b32 s81, s3, 13
s_add_u32 s76, s76, s81
s_lshr_b32 s69, s68, 1
s_lshl_b32 s77, s63, 1
s_add_u32 s77, s77, s69
s_lshl_b32 s77, s77, 15
s_lshl_b32 s81, s68, 13
s_add_u32 s77, s77, s81
s_xor_b32 s78, s77, 0x8000
s_lshl_b32 s81, s4, 3
s_add_u32 s81, s81, s63
s_lshl_b32 s81, s81, 17
s_lshl_b32 s82, s68, 15
s_add_u32 s81, s81, s82
v_lshl_add_u32 v17, v0, 4, s81
v_lshl_add_u32 v28, v0, 4, s70
v_and_b32 v29, 31, v0
v_lshrrev_b32 v30, 5, v0
v_bfe_u32 v31, v0, 1, 3
v_xor_b32 v31, v31, v30
v_lshl_add_u32 v29, v29, 7, s70
v_lshl_add_u32 v18, v31, 4, v29
v_xor_b32 v19, 2, v31
v_lshl_add_u32 v19, v19, 4, v29
v_xor_b32 v20, 4, v31
v_lshl_add_u32 v20, v20, 4, v29
v_xor_b32 v21, 6, v31
v_lshl_add_u32 v21, v21, 4, v29
v_bfe_u32 v29, v0, 2, 2
v_lshl_add_u32 v30, v30, 3, v29
v_bfe_u32 v31, v0, 1, 1
v_lshlrev_b32 v31, 3, v31
v_add_u32 v31, s70, v31
v_lshl_add_u32 v26, v30, 7, v31
v_lshl_add_u32 v31, v30, 8, v31
v_and_b32 v30, 16, v0
v_add_u32 v26, v26, v30
v_lshl_add_u32 v31, v30, 1, v31
v_and_b32 v30, 1, v0
v_lshl_add_u32 v26, v30, 5, v26
v_lshl_add_u32 v31, v30, 4, v31
v_lshl_add_u32 v22, v29, 6, v31
v_xor_b32 v23, 1, v29
v_lshl_add_u32 v23, v23, 6, v31
v_xor_b32 v24, 2, v29
v_lshl_add_u32 v24, v24, 6, v31
v_xor_b32 v25, 3, v29
v_lshl_add_u32 v25, v25, 6, v31
v_lshrrev_b32 v29, 1, v29
s_and_b32 s81, s68, 1
v_xor_b32 v29, s81, v29
v_xor_b32 v30, 1, v29
v_lshl_add_u32 v27, v30, 6, v26
v_lshl_add_u32 v26, v29, 6, v26
s_xor_b32 s81, s68, 1
s_mul_i32 s41, s81, 40960
s_sub_u32 s41, s41, s70
s_xor_b32 s81, s68, 2
s_mul_i32 s42, s81, 40960
s_sub_u32 s42, s42, s70
s_xor_b32 s81, s68, 3
s_mul_i32 s43, s81, 40960
s_sub_u32 s43, s43, s70
s_lshl_b32 s81, s4, 2
s_add_u32 s82, s81, s7
s_lshl_b32 s82, s82, 2
s_add_u32 s82, s82, s3
s_lshl_b32 s82, s82, 2
s_add_u32 s44, s82, 128
s_lshr_b32 s82, s63, 1
s_add_u32 s82, s82, s81
s_lshl_b32 s82, s82, 2
s_add_u32 s82, s82, s68
s_lshl_b32 s82, s82, 2
s_add_u32 s45, s82, 128
s_lshl_b32 s81, s4, 3
s_lshl_b32 s82, s7, 1
s_add_u32 s81, s81, s82
s_add_u32 s81, s81, s69
s_lshl_b32 s81, s81, 5
s_add_u32 s81, s81, s6
s_lshl_b32 s81, s81, 12
s_and_b32 s82, s68, 1
s_lshl_b32 s82, s82, 11
s_add_u32 s46, s81, s82
s_lshl_b32 s81, s63, 1
s_add_u32 s81, s81, s69
s_lshl_b32 s81, s81, 17
s_lshl_b32 s82, s4, 11
s_add_u32 s81, s81, s82
s_lshl_b32 s82, s62, 7
s_add_u32 s81, s81, s82
s_and_b32 s82, s68, 1
s_lshl_b32 s82, s82, 6
s_add_u32 s47, s81, s82
s_mov_b32 s48, 0x3e0293ee
"""
for l in P2.strip().split("\n"): e(l)

BT = [1, 2, 3, 0]
qacc = {}
i = 0
for bt in BT:
    for t in range(4):
        if bt == 1 and t < 2: qacc[bt, t] = ("a", 160 + 16 * t)
        else: qacc[bt, t] = ("v", 32 + 16 * i); i += 1
def R(x, n): return f"{x[0]}[{x[1]}:{x[1]+n-1}]"
KREG = {1: 0, 2: 32, 3: 0, 0: 32}
VREG = 192
def rdK(bt):
    kr = []
    for j in range(4):
        ad = 18 + j
        if bt: kr.append(f"v_add_u32 v{29+(j&1)}, s{40+bt}, v{18+j}"); ad = 29 + (j & 1)
        for h in range(2):
            kr.append(lazy(lambda j=j, h=h, ad=ad, bt=bt: f"ds_read_b128 {A(KREG[bt]+16*h+4*j)}, v{ad} offset:{g.slot['K',h]*4096}"))
    return kr
g.run(wait(("X",0,0),("W",0)))
for f in rdW(("W",0),128) + rdX(("X",0,0),0): g.run(f)
for bt in range(1,4):
    g.run(wait(("X",0,bt)))
    for f in rdX(("X",0,bt),16*bt): g.run(f)
cons = [("X",0,0),("W",0),("X",0,1),("X",0,2),("X",0,3)]
stamp()
qb = {}
def cvts(bt):
    r = []
    order = [2, 3, 0, 1] if bt == 1 else range(4)
    for t in order:
        k, b = qacc[bt, t]
        if k == "v":
            qb[bt, t] = b
            r += [f"v_cvt_pk_bf16_f32 v{b+j}, v{b+2*j}, v{b+2*j+1}" for j in range(8)]
        else:
            d = qacc[bt, t + 2][1] + 8; qb[bt, t] = d
            for j in range(8):
                tm = 1 + 2 * (j % 4)
                r += [f"v_accvgpr_read_b32 v{tm}, a{b+2*j}", f"v_accvgpr_read_b32 v{tm+1}, a{b+2*j+1}",
                      f"v_cvt_pk_bf16_f32 v{d+j}, v{tm}, v{tm+1}"]
    return r
for s in range(16):
    st, ks = s // 4, s % 4
    if s == 14:
        g.run(wait(("K",0),("K",1))); e("s_barrier")
    e("s_waitcnt lgkmcnt(0)"); rel(*cons); cons = []
    mf = [mfma(R(qacc[bt,t],16), A(128+16*(s&1)+4*t), A(64*(st&1)+16*bt+4*ks), s == 0) for bt in BT for t in range(4)]
    dm = issue(OPT['maxissue'])
    rd = []
    if s < 15: cons.append(("W",s+1))
    cons.append(("X",st+1,ks) if s < 12 else ("V",ks//2,ks%2))
    if cons: rd.append(wait(*cons))
    if s < 15: rd += rdW(("W",s+1), 128+16*((s+1)&1))
    rd += rdX(cons[-1], 64*((st+1)&1)+16*ks if s < 12 else VREG+16*ks)
    plans = [spread(dm, 0, 8, 16) if dm else [[]]*16, spread(rd, 8, 14, 16) if rd else [[]]*16]
    if s >= 14: plans.append(spread(rdK(BT[s-14]), 0, 8, 16))
    if s == 15: plans.append(spread(cvts(1), 7, 16, 16))
    block(mf, *plans)
stamp()
SOWN = qacc[2, 0][1]
sacc = {1: ("a",64), 2: ("a",80), 3: ("a",96), 0: ("v",SOWN)}
ex = {}
def wrpart(bt, src):
    ex[bt] = g.free.pop(0)
    return [f"ds_write_b128 v28, {A(src+4*q)} offset:{ex[bt]*4096+q*1024}" for q in range(4)]
for n, bt in enumerate(BT):
    e("s_waitcnt lgkmcnt(0)"); rel(*cons); cons = []
    mf = [mfma(R(sacc[bt],16), A(KREG[bt]+8*t+4*m), V(qb[bt,t]+4*m), t == 0 and m == 0) for t in range(4) for m in range(2)]
    plans = []
    if n < 3: plans.append(spread(cvts(BT[n+1]), 0, 8, 8))
    if n > 0: plans.append(spread(wrpart(BT[n-1], sacc[BT[n-1]][1]), 3, 7, 8))
    if n == 0:
        cons = [("O",0),("O",1)]
        plans.append(spread([wait(*cons)] + rdO(cons[0],128) + rdO(cons[1],144), 1, 7, 8))
    if n in (1, 2): plans.append(spread(rdK(BT[n+1]), 0, 6, 8))
    block(mf, *plans)
e("s_waitcnt lgkmcnt(0)")
e("s_barrier"); rel(("K",0),("K",1))
stamp()
T0 = 208
sm1 = []
for bt in (1,2,3):
    sm1.append(f"v_add_u32 v{bt}, s{40+bt}, v28")
    sm1 += [f"ds_read_b128 {V(T0+16*(bt-1)+4*q)}, v{bt} offset:{ex[bt]*4096+q*1024}" for q in range(4)]
S = SOWN
sm = ["s_waitcnt lgkmcnt(0)"]
for j in range(16): sm.append(f"v_add_f32 v{T0+j}, v{T0+j}, v{T0+16+j}")
for j in range(16): sm.append(f"v_add_f32 v{S+j}, v{S+j}, v{T0+32+j}")
for j in range(16): sm.append(f"v_add_f32 v{S+j}, v{S+j}, v{T0+j}")
sm += [f"v_max3_f32 v1, v{S}, v{S+1}, v{S+2}", f"v_max3_f32 v2, v{S+3}, v{S+4}, v{S+5}"]
for j in range(6,16,4):
    sm.append(f"v_max3_f32 v1, v1, v{S+j}, v{S+j+1}")
    if j+2 < 16: sm.append(f"v_max3_f32 v2, v2, v{S+j+2}, v{S+j+3}")
sm += ["v_max_f32 v1, v1, v2", "v_mov_b32 v2, v1", "v_permlane32_swap_b32 v1, v2", "v_max_f32 v1, v1, v2", "v_mul_f32 v1, s48, v1"]
for j in range(16): sm.append(f"v_fma_f32 v{S+j}, v{S+j}, s48, -v1")
for j in range(16): sm.append(f"v_exp_f32 v{S+j}, v{S+j}")
sm += [f"v_add_f32 v1, v{S}, v{S+1}", f"v_add_f32 v2, v{S+2}, v{S+3}"]
for j in range(4,16,2): sm += [f"v_add_f32 v1, v1, v{S+j}", f"v_add_f32 v2, v2, v{S+j+1}"]
sm += ["v_add_f32 v1, v1, v2", "v_mov_b32 v2, v1", "v_permlane32_swap_b32 v1, v2", "v_add_f32 v1, v1, v2", "v_rcp_f32 v1, v1",
       "v_lshlrev_b32 v3, 4, v0"]
for j in range(16): sm.append(f"v_mul_f32 v{S+j}, v{S+j}, v1")
for j in range(8): sm.append(f"v_cvt_pk_bf16_f32 v{S+j}, v{S+2*j}, v{S+2*j+1}")
def pst(m):
    def f():
        e(f"buffer_store_dwordx4 {V(S+4*m)}, v3, s[28:31], s46 offen offset:{m*1024} sc1"); g.last["PST"] = g.vm
    return f
sm += [pst(0), pst(1)]

ub = {0:(96,128), 1:(160,32), 2:(96,128), 3:(160,32), 4:(192,224), 5:(96,128), 6:(64,32), 7:(224,128)}
ustore = {0:("a",64), 1:("a",96), 2:("a",0)}
def utile(h, tt): return ub[h][tt>>1] + 16*(tt&1)
def ucvt(h):
    r = []; d = ub[h][0]
    for tt in range(4):
        b = utile(h, tt)
        for j in range(8):
            r.append(f"v_cvt_pk_bf16_f32 v{d+8*tt+j}, v{b+2*j}, v{b+2*j+1}")
            if h in ustore: r.append(f"v_accvgpr_write_b32 a{ustore[h][1]+8*tt+j}, v{d+8*tt+j}")
    if h not in ustore: ustore[h] = ("v", d)
    return r
NSM = 3
smparts = [sm[i*len(sm)//NSM:(i+1)*len(sm)//NSM] for i in range(NSM)]
pend_cvt = []
for s in range(16):
    h, half = s // 2, s % 2
    e("s_waitcnt lgkmcnt(0)"); rel(*cons)
    if s == NSM + 1:
        g.run(wait("PST")); e("s_barrier")
        for bt in (1,2,3): g.free.append(ex[bt])
        for l in ["s_cmp_lg_u32 s68, 0", "s_cbranch_scc1 L_nosig", "s_mov_b64 exec, 1", "v_mov_b32 v1, 1"]: e(l)
        g.raw("    buffer_atomic_add v1, off, s[64:67], s44"); e("s_mov_b64 exec, -1"); g.raw("L_nosig:"); e("s_nop 3")
        stamp()
    if s == OPT['pollstep']:
        e("buffer_load_dword v2, off, s[64:67], s45 sc1"); g.last["POLL"] = g.vm
    if s == OPT['pollstep'] + 2:
        g.run(wait("POLL"))
        for l in ["v_readfirstlane_b32 s81, v2", "s_cmp_eq_u32 s81, 8", "s_cbranch_scc1 L_ready", "s_mov_b32 s82, 0"]: e(l)
        g.raw("L_spin:")
        for l in ["s_sleep 2", "buffer_load_dword v2, off, s[64:67], s45 sc1", "s_add_u32 s82, s82, 1", "s_waitcnt vmcnt(0)",
                  "v_readfirstlane_b32 s81, v2", "s_cmp_eq_u32 s81, 8", "s_cbranch_scc1 L_ready",
                  "s_cmp_lt_u32 s82, 0x4000", "s_cbranch_scc1 L_spin"]: g.raw("    " + l)
        g.raw("L_ready:"); gate["P"] = True
        for l in ["s_lshl_b32 s81, s69, 11", "v_add_u32 v18, s81, v28", "v_xor_b32 v19, 0x800, v18"]: e(l)
        stamp()
    wb = 128 + 32 * (s & 1)
    mf = [mfma(V(utile(h,2*b+nt),16), A(VREG+32*b+16*half+4*k), A(wb+8*k+4*nt), half == 0 and k == 0)
          for k in range(4) for b in range(2) for nt in range(2)]
    dm = issue(OPT['maxissue'] + 1)
    wn = 128 + 32 * ((s + 1) & 1)
    if s < 15:
        cons = [("O",2*s+2),("O",2*s+3)]; rd = [wait(*cons)] + rdO(cons[0], wn) + rdO(cons[1], wn+16)
    else:
        cons = [("P",0),("P",1)]; rd = [wait(*cons)] + rdP(cons[0], wn) + rdP(cons[1], wn+16)
    plans = [spread(dm, 0, 8, 16) if dm else [[]]*16, spread(rd, 7, 14, 16)]
    if half == 0 and h > 0: pend_cvt = ucvt(h-1)
    if pend_cvt:
        n = len(pend_cvt) // 2 if half == 0 else len(pend_cvt)
        plans.append(spread(pend_cvt[:n], 3 if half == 0 else 0, 16, 16)); pend_cvt = pend_cvt[n:]
    if s == 0: plans = [spread(sm1, 0, 3, 16)] + plans + [spread(smparts[0], 5, 16, 16)]
    elif s < NSM: plans.append(spread(smparts[s], 0, 16, 16))
    block(mf, *plans)
stamp()
OOWN = 32
oacc = {0: ("v",OOWN), 1: ("a",192), 2: ("a",208), 3: ("a",224)}
for s in range(4):
    e("s_waitcnt lgkmcnt(0)"); rel(*cons)
    wb = 128 + 32 * (s & 1); wn = 128 + 32 * ((s + 1) & 1)
    plans = []
    if s == 0: plans.append(spread(ucvt(7), 3, 16, 16))
    mf = []
    TT = [1,2,3,0] if s == 3 else [0,1,2,3]
    seq = [(hh,tt,m) for tt in TT for hh in range(2) for m in range(2)] if s == 3 else [(hh,tt,m) for hh in range(2) for m in range(2) for tt in TT]
    for hh, tt, m in seq:
        u = ustore[2*s+hh]
        mf.append(mfma(R(oacc[tt],16), R((u[0],u[1]+8*tt+4*m),4), A(wb+16*hh+8*(tt>>1)+4*m), s == 0 and hh == 0 and m == 0))
    dm = issue(99)
    if dm: plans.append(spread(dm, 0, 8, 16))
    if s < 3:
        cons = [("P",2*s+2),("P",2*s+3)]
        plans.append(spread([wait(*cons)] + rdP(cons[0], wn) + rdP(cons[1], wn+16), 8, 14, 16))
    else:
        for tt in (1,2): plans.append(spread(wrpart(tt, oacc[tt][1]), 4*tt+6, 16, 16))
        adr = ["v_and_b32 v4, 31, v0", "v_lshrrev_b32 v5, 5, v0", "v_lshlrev_b32 v4, 12, v4", "v_lshl_add_u32 v4, v5, 5, v4"]
        adr += [f"v_add_u32 v{tt}, s{40+tt}, v28" for tt in (1,2,3)]
        plans.append(spread(adr, 0, 7, 16))
    block(mf, *plans)
for l in wrpart(3, oacc[3][1]): e(l)
e("s_waitcnt lgkmcnt(0)"); e("s_barrier")
T0 = 64
for tt in (1,2,3):
    for q in range(4): e(f"ds_read_b128 {V(T0+16*(tt-1)+4*q)}, v{tt} offset:{ex[tt]*4096+q*1024}")
e("s_waitcnt lgkmcnt(0)")
S = OOWN
for j in range(16): e(f"v_add_f32 v{T0+j}, v{T0+j}, v{T0+16+j}")
for j in range(16): e(f"v_add_f32 v{S+j}, v{S+j}, v{T0+32+j}")
for j in range(16): e(f"v_add_f32 v{S+j}, v{S+j}, v{T0+j}")
for j in range(8): e(f"v_cvt_pk_bf16_f32 v{S+j}, v{S+2*j}, v{S+2*j+1}")
for m in range(2): e(f"buffer_store_dwordx4 {V(S+4*m)}, v4, s[32:35], s47 offen offset:{16*m}")
if OPT['stamp']:
    e("s_waitcnt vmcnt(0)"); stamp()
    e(f"s_cmp_lg_u32 s2, {OPT['stamp']-1}"); e("s_cbranch_scc1 L_end"); e("s_cmp_lg_u32 s68, 0"); e("s_cbranch_scc1 L_end")
    e("s_mov_b64 exec, 1"); e("s_waitcnt lgkmcnt(0)")
    for i in range(1, nst[0]):
        e(f"s_sub_u32 s81, s{84+2*i}, s84"); e("v_mov_b32 v1, s81"); e(f"buffer_store_dword v1, off, s[64:67], 0 offset:{4*i}")
assert nxt[0] == len(stream)

hdr = open(f"cdna_kernels/{NAME}.s.ref").read().split("; Override launch")[0]
txt = hdr + f"""; @launch grid=(256,1,1) block=(256,1,1) lds=163840
.amdgcn_target "amdgcn-amd-amdhsa--gfx950"
.text
.globl {NAME}_kernel
.p2align 8
.type {NAME}_kernel,@function
{NAME}_kernel:
""" + "\n".join(g.out) + f"""
L_end:
    s_endpgm
.section .rodata,"a"
.p2align 6
.amdhsa_kernel {NAME}_kernel
  .amdhsa_next_free_vgpr 512
  .amdhsa_next_free_sgpr 102
  .amdhsa_accum_offset 256
  .amdhsa_group_segment_fixed_size 0
  .amdhsa_kernarg_size 104
  .amdhsa_user_sgpr_count 2
  .amdhsa_user_sgpr_kernarg_segment_ptr 1
  .amdhsa_system_sgpr_workgroup_id_x 1
.end_amdhsa_kernel
"""
open(sys.argv[1], "w").write(txt)
```

```python
import re, sys
NAME = "concat_heads__gqa_block_cached__gqa_block_cached__near_ridge"
OPT = dict(stamp=0, nslots=10, pollstep=9, maxissue=3)
for a in sys.argv[2:]:
    k, v = a.split("="); OPT[k] = int(v)
AREA = 40960

def regs(tok):
    tok = tok.strip()
    m = re.fullmatch(r"-?([va])\[(\d+):(\d+)\]", tok)
    if m: return [m.group(1) + str(i) for i in range(int(m.group(2)), int(m.group(3)) + 1)]
    m = re.fullmatch(r"-?([va])(\d+)", tok)
    if m: return [m.group(1) + m.group(2)]
    return []

class Gen:
    def __init__(s):
        s.out = []; s.ws = 0
        s.mf_w = {}; s.va_w = {}; s.mf_c = {}; s.tr_w = {}; s.st_r = {}
        s.vm = 0
        s.free = list(range(OPT['nslots'])); s.slot = {}; s.last = {}
        s.pend_lds = set()
    def raw(s, t): s.out.append(t)
    def e(s, t):
        op = t.split()[0]
        if OPT.get('nomfma') and op.startswith("v_mfma"): return
        if OPT.get('nods') and op.startswith("ds_read"): return
        if OPT.get('nodma') and " lds" in t and s.vm > 40: s.vm += 1; return
        ops = [x.strip() for x in t[len(op):].split(",")]
        ops = [o.split()[0] if o else o for o in ops]
        need = 0
        def chk(tab, rs, n):
            nonlocal need
            for r in rs:
                if r in tab: need = max(need, n - (s.ws - tab[r]))
        if op.startswith("v_mfma"):
            d, a, b, c = regs(ops[0]), regs(ops[1]), regs(ops[2]), regs(ops[3])
            chk(s.va_w, a + b + c, 2); chk(s.mf_w, a + b, 12)
            if c != d: chk(s.mf_w, c + d, 12)
            rd, wr = a + b + c, d
        elif op.startswith("v_"):
            wr = regs(ops[0]); rd = sum((regs(o) for o in ops[1:]), [])
            if op.startswith("v_fmac") or op.startswith("v_permlane"): rd += wr
            if op.startswith("v_permlane"): wr = wr + regs(ops[1]); chk(s.va_w, rd, 2)
            if op.startswith("v_readfirstlane"): chk(s.va_w, rd, 1)
            chk(s.mf_w, rd + wr, 12); chk(s.mf_c, wr, 7); chk(s.st_r, wr, 2)
            if not re.match(r"v_(exp|rcp|log)", op): chk(s.tr_w, rd, 1)
        elif op.startswith("ds_read") or (op.startswith("buffer_load") and " lds" not in t):
            wr = regs(ops[0]); rd = regs(ops[1]); chk(s.mf_w, rd + wr, 12); chk(s.st_r, wr, 1)
        elif op.startswith("ds_write") or op.startswith("buffer_"):
            wr = []; rd = sum((regs(o) for o in ops[:2]), []); chk(s.mf_w, rd, 12)
        else: rd, wr = [], []
        for r in rd + wr:
            assert r not in s.pend_lds or op.startswith("ds_read") and r not in rd and False, ("unwaited lds reg", t)
        if need > 0:
            s.out.append(f"    s_nop {need-1}"); s.ws += need
            if OPT.get('verbose'): print("nop", need, "before", t, file=sys.stderr)
        s.out.append("    " + t); s.ws += 1
        if op == "s_nop": s.ws += int(ops[0])
        if op.startswith("v_mfma"):
            for r in wr: s.mf_w[r] = s.ws
            for r in regs(ops[3]): s.mf_c[r] = s.ws
        elif op.startswith("v_"):
            for r in wr:
                s.va_w[r] = s.ws; s.mf_w.pop(r, None)
                if re.match(r"v_(exp|rcp|log)", op): s.tr_w[r] = s.ws
                else: s.tr_w.pop(r, None)
        if op.startswith("ds_read"): s.pend_lds |= set(wr)
        if op.startswith("s_waitcnt") and "lgkmcnt(0)" in t: s.pend_lds = set()
        if op.startswith("buffer_store"):
            for r in regs(ops[0]): s.st_r[r] = s.ws
        if op.startswith("buffer_"): s.vm += 1
    def run(s, f):
        if callable(f): f()
        else: s.e(f)
g = Gen(); e = g.e

B0 = OPT.get("b0", 5); BST = OPT.get("burst", 1); NB = OPT.get("nb", 8)
stream = [("X",0,0),("W",0),("X",0,1),("X",0,2),("X",0,3)]
CONS = {0: [("W",1),("V",0,0)], 1: [("W",2),("V",0,1)], 2: [("W",3),("V",1,0),("V",1,1),("T",)], 3: [("X",1,i) for i in range(4)] + [("W",4)]}
for st in range(4, 16):
    CONS[st] = ([("W",st+1)] if st < 15 else []) + ([("X", st//4+1, st%4)] if st < 12 else [])
for st in range(16):
    stream += CONS[st]
    if st == 12: stream += [("K",0),("K",1)]
stream += [("O",i) for i in range(4 if BST else 0, 32)] + [("P",i) for i in range(8)]
bpos = []
nxt = [0]; gate = {"P": False}
SOFF = "s80"
STX, STW, HD = 49, 53, 90
ORD = {0:[[0,1,2,3]]*4, 1:[[0,1,2,3],[1,2,3,0],[2,3,0,1],[3,0,1,2]], 2:[[0,1,2,3],[0,2,3,1],[1,0,3,2],[1,3,2,0]], 3:[[0,1,2,3],[0,1,2,3],[1,0,3,2],[1,0,3,2]]}[OPT.get("ord",1)]
def item_ops(it):
    k = it[0]
    def head():
        if it not in g.slot: g.slot[it] = g.free.pop(0)
        sl = g.slot[it]
        e(f"s_add_u32 m0, s70, {sl*4096}")
        if k == "X": e(f"s_add_u32 {SOFF}, s{72+it[2]}, s{STX+it[1]}")
        elif k == "W": e(f"s_add_u32 {SOFF}, s{STW+it[1]//4}, {it[1]%4*16*8192}")
        elif k == "K": e(f"s_add_u32 {SOFF}, s76, {it[1]*128}")
        elif k == "T": e("s_and_b32 s81, s6, 7"); e("s_lshl_b32 s81, s81, 10"); e(f"s_add_u32 {SOFF}, s76, s81"); e("v_lshlrev_b32 v29, 4, v0")
        elif k == "V": e(f"s_add_u32 {SOFF}, s{77+it[1]}, {it[2]*128}")
        elif k == "O": e(f"s_add_u32 {SOFF}, s{HD+it[1]//4}, {it[1]%4*32*2048}")
        elif k == "P": e(f"s_lshr_b32 {SOFF}, s{HD+it[1]}, 6")
    vb, srd = dict(X=(1,8), W=(5,12), K=(9,16), V=(9,20), O=(13,24), P=(17,28), T=(29,16))[k]
    def dma(i):
        def f():
            if i == 0: head()
            v = vb if k == "P" else vb + i
            fl = " sc1" if k == "P" else ""
            e(f"buffer_load_dwordx4 v{v}, s[{srd}:{srd+3}], {SOFF} offen offset:{i*1024}{fl} lds")
            g.last[it] = g.vm
        return f
    return [dma(i) for i in range(1 if k == "T" else 4)]
def issue(n, reserve=0):
    r = []; avail = len(g.free) - reserve
    while n > 0 and avail > 0 and nxt[0] < len(stream):
        it = stream[nxt[0]]
        if it[0] == "P" and not gate["P"]: break
        r += item_ops(it); nxt[0] += 1; n -= 1; avail -= 1
    return r
def wait(*its):
    def f():
        l = max(g.last[it] for it in its); n = g.vm - l
        cl = [c for c, p in enumerate(bpos) if p >= l and not (its[0][0] == "O" and its[0][1] < 4)]
        if cl and n < 63:
            lab = f"L_w{len(g.out)}"
            e(f"s_sub_u32 s81, s71, {cl[0]}"); e(f"s_cmp_le_u32 s81, {cl[-1]-cl[0]}"); e(f"s_waitcnt vmcnt({min(n+16,63)})")
            e(f"s_cbranch_scc1 {lab}"); e(f"s_waitcnt vmcnt({n})"); g.raw(lab + ":")
        else: e(f"s_waitcnt vmcnt({min(n,63)})")
    return f
def rel(*its):
    for it in its: g.free.append(g.slot.pop(it))
def A(b, n=4): return f"a[{b}:{b+n-1}]"
def V(b, n=4): return f"v[{b}:{b+n-1}]"
def lazy(fn): return lambda: e(fn())
def rdX(it, dst, addr=18):
    return [lazy(lambda ks=ks: f"ds_read_b128 {A(dst+4*ks)}, v{addr+ks} offset:{g.slot[it]*4096}") for ks in range(4)]
def rdW(it, dst):
    return [lazy(lambda t=t, rd=rd: f"ds_read_b64_tr_b16 {A(dst+4*t+2*rd,2)}, v{22+t} offset:{g.slot[it]*4096+rd*1024}")
            for t in range(4) for rd in range(2)]
def rdO(it, dst):
    return [lazy(lambda k=k, nt=nt, rd=rd: f"ds_read_b64_tr_b16 {A(dst+8*k+4*nt+2*rd,2)}, v{26+nt} offset:{g.slot[it]*4096+k*2048+rd*512}")
            for k in range(2) for nt in range(2) for rd in range(2)]
def rdP(it, dst):
    return [lazy(lambda b=b, m=m: f"ds_read_b128 {A(dst+8*b+4*m)}, v{18+b} offset:{g.slot[it]*4096+m*1024}")
            for b in range(2) for m in range(2)]
def spread(lst, lo, hi, n):
    r = [[] for _ in range(n)]
    for i, f in enumerate(lst): r[lo + i * (hi - lo) // len(lst)].append(f)
    return r
def block(mf, *plans):
    for i, m in enumerate(mf):
        e(m)
        for p in plans:
            for f in p[i]: g.run(f)
def mfma(d, a, b, first): return f"v_mfma_f32_32x32x16_bf16 {d}, {a}, {b}, {'0' if first else d}"
nst = [0]
def stamp(fine=False):
    if OPT['stamp']:
        if nst[0] >= 3: e(f"v_writelane_b32 v31, s84, {nst[0]}")
        nst[0] += 1
        r = {1: 86, 2: 88}.get(nst[0], 84)
        e(f"s_memtime s[{r}:{r+1}]")
P = """
s_cmp_ge_u32 s2, 256
s_cbranch_scc1 L_end
s_load_dwordx16 s[36:51], s[0:1], 0
s_load_dwordx8 s[52:59], s[0:1], 64
s_load_dwordx2 s[60:61], s[0:1], 96
s_memrealtime s[98:99]
v_lshrrev_b32 v29, 6, v0
v_and_b32 v0, 63, v0
v_readfirstlane_b32 s68, v29
s_and_b32 s3, s2, 3
s_bfe_u32 s4, s2, 0x10002
s_lshr_b32 s5, s2, 3
s_and_b32 s6, s5, 7
s_lshl_b32 s7, s3, 3
s_add_u32 s6, s6, s7
s_lshr_b32 s7, s5, 3
s_and_b32 s62, s5, 3
s_lshl_b32 s63, s3, 2
s_add_u32 s62, s62, s63
s_lshr_b32 s63, s5, 2
s_mul_i32 s70, s68, 40960
SAME
v_lshrrev_b32 v29, 3, v0
v_and_b32 v30, 7, v0
v_lshrrev_b32 v31, 4, v0
v_xor_b32 v9, v30, v31
v_xor_b32 v10, 4, v9
v_lshlrev_b32 v9, 4, v9
v_lshlrev_b32 v10, 4, v10
s_lshl_b32 s81, s7, 18
s_lshl_b32 s82, s68, 9
s_add_u32 s81, s81, s82
v_lshl_add_u32 v1, v29, 11, s81
v_add_u32 v2, v1, v10
v_add_u32 v1, v1, v9
v_add_u32 v2, 15360, v2
v_add_u32 v3, 30720, v1
v_add_u32 v4, 30720, v2
v_and_b32 v5, 15, v0
v_lshlrev_b32 v6, 2, v31
v_xor_b32 v5, v5, v6
v_lshlrev_b32 v5, 4, v5
v_lshl_add_u32 v5, v31, 13, v5
s_lshl_b32 s81, s68, 21
s_lshl_b32 s82, s6, 8
s_add_u32 s81, s81, s82
v_add_u32 v5, s81, v5
v_add_u32 v6, 31744, v5
v_add_u32 v7, 63488, v5
v_add_u32 v8, 95232, v5
s_lshl_b32 s72, s68, 16
s_xor_b32 s73, s72, 0x10000
s_xor_b32 s74, s72, 0x20000
s_xor_b32 s75, s72, 0x30000
s_mov_b32 s10, 0x100000
s_mov_b32 s11, 0x20000
s_mov_b32 s14, 0x800000
s_mov_b32 s15, 0x20000
s_cmp_eq_u32 s4, 0
s_waitcnt lgkmcnt(0)
s_cselect_b32 s8, s36, s46
s_cselect_b32 s9, s37, s47
s_cselect_b32 s12, s42, s52
s_cselect_b32 s13, s43, s53
s_cselect_b32 s16, s38, s48
s_cselect_b32 s17, s39, s49
s_cselect_b32 s20, s40, s50
s_cselect_b32 s21, s41, s51
s_cselect_b32 s24, s44, s54
s_cselect_b32 s25, s45, s55
"""
stamp()
P = P.replace("SAME\n", {0:"", 1:"s_mov_b32 s6, 0\ns_mov_b32 s62, 0\n", 2:"s_and_b32 s6, s6, 1\ns_and_b32 s62, s62, 1\n"}[OPT.get('same',0)])
for l in P.strip().split("\n"): e(l)
if OPT['stamp']: e("s_memrealtime s[36:37]")
for l in ["s_mov_b32 s28, s60", "s_mov_b32 s29, s61", "s_mov_b32 s32, s56", "s_mov_b32 s33, s57", "s_mov_b32 s64, s58", "s_mov_b32 s65, s59"]: e(l)
for l in ["s_mov_b32 s66, 256", "s_mov_b32 s67, 0x20000", "s_or_b32 s81, s2, s68", "s_cbranch_scc1 L_nonon", "s_or_b32 s98, s98, 1", "v_mov_b32 v18, s98",
          "v_lshlrev_b32 v19, 6, v0", "s_mov_b64 exec, 15"]: e(l)
g.raw("    buffer_store_dword v18, v19, s[64:67], 0 offen sc1"); e("s_mov_b64 exec, -1"); g.raw("L_nonon:")
pk = sum(ORD[c][i] << (8*c + 2*i) for c in range(4) for i in range(4))
e("s_add_u32 s81, s6, s7"); e("s_and_b32 s81, s81, 3"); e("s_lshl_b32 s81, s81, 3"); e(f"s_lshr_b32 s81, {hex(pk)}, s81")
for i in range(4):
    e(f"s_bfe_u32 s82, s81, {hex(0x20000 | 2*i)}"); e(f"s_lshl_b32 s{STX+i}, s82, 7"); e(f"s_lshl_b32 s{STW+i}, s82, 19")
stamp()
for f in issue(OPT.get("pro",6)): g.run(f)
P2 = """
s_mov_b32 s18, 0x80000
s_mov_b32 s19, 0x20000
s_mov_b32 s22, 0x80000
s_mov_b32 s23, 0x20000
s_mov_b32 s26, 0x800000
s_mov_b32 s27, 0x20000
s_mov_b32 s30, 0x242000
s_mov_b32 s31, 0x20000
s_mov_b32 s34, 0x200000
s_mov_b32 s35, 0x20000
v_and_b32 v13, 1, v31
v_lshlrev_b32 v13, 2, v13
v_xor_b32 v13, v13, v30
v_lshlrev_b32 v13, 4, v13
v_lshl_add_u32 v13, v29, 11, v13
s_lshl_b32 s81, s68, 21
s_lshl_b32 s82, s62, 7
s_add_u32 s81, s81, s82
v_add_u32 v13, s81, v13
v_add_u32 v14, 15360, v13
v_add_u32 v15, 30720, v13
v_add_u32 v16, 46080, v13
v_lshl_add_u32 v9, v29, 8, v9
v_lshl_add_u32 v10, v29, 8, v10
v_add_u32 v10, 1024, v10
v_add_u32 v11, 2048, v9
v_add_u32 v12, 2048, v10
s_lshl_b32 s76, s7, 2
s_add_u32 s76, s76, s68
s_lshl_b32 s76, s76, 15
s_lshl_b32 s81, s3, 13
s_add_u32 s76, s76, s81
s_lshr_b32 s69, s68, 1
s_lshl_b32 s77, s63, 1
s_add_u32 s77, s77, s69
s_lshl_b32 s77, s77, 15
s_lshl_b32 s81, s68, 13
s_add_u32 s77, s77, s81
s_xor_b32 s78, s77, 0x8000
s_lshl_b32 s81, s4, 3
s_add_u32 s81, s81, s63
s_lshl_b32 s81, s81, 17
s_lshl_b32 s82, s68, 15
s_add_u32 s81, s81, s82
v_lshl_add_u32 v17, v0, 4, s81
v_lshl_add_u32 v28, v0, 4, s70
v_and_b32 v29, 31, v0
v_lshrrev_b32 v30, 5, v0
v_bfe_u32 v31, v0, 1, 3
v_xor_b32 v31, v31, v30
v_lshl_add_u32 v29, v29, 7, s70
v_lshl_add_u32 v18, v31, 4, v29
v_xor_b32 v19, 2, v31
v_lshl_add_u32 v19, v19, 4, v29
v_xor_b32 v20, 4, v31
v_lshl_add_u32 v20, v20, 4, v29
v_xor_b32 v21, 6, v31
v_lshl_add_u32 v21, v21, 4, v29
v_bfe_u32 v29, v0, 2, 2
v_lshl_add_u32 v30, v30, 3, v29
v_bfe_u32 v31, v0, 1, 1
v_lshlrev_b32 v31, 3, v31
v_add_u32 v31, s70, v31
v_lshl_add_u32 v26, v30, 7, v31
v_lshl_add_u32 v31, v30, 8, v31
v_and_b32 v30, 16, v0
v_add_u32 v26, v26, v30
v_lshl_add_u32 v31, v30, 1, v31
v_and_b32 v30, 1, v0
v_lshl_add_u32 v26, v30, 5, v26
v_lshl_add_u32 v31, v30, 4, v31
v_lshl_add_u32 v22, v29, 6, v31
v_xor_b32 v23, 1, v29
v_lshl_add_u32 v23, v23, 6, v31
v_xor_b32 v24, 2, v29
v_lshl_add_u32 v24, v24, 6, v31
v_xor_b32 v25, 3, v29
v_lshl_add_u32 v25, v25, 6, v31
v_lshrrev_b32 v29, 1, v29
s_and_b32 s81, s68, 1
v_xor_b32 v29, s81, v29
v_xor_b32 v30, 1, v29
v_lshl_add_u32 v27, v30, 6, v26
v_lshl_add_u32 v26, v29, 6, v26
s_xor_b32 s81, s68, 1
s_mul_i32 s41, s81, 40960
s_sub_u32 s41, s41, s70
s_xor_b32 s81, s68, 2
s_mul_i32 s42, s81, 40960
s_sub_u32 s42, s42, s70
s_xor_b32 s81, s68, 3
s_mul_i32 s43, s81, 40960
s_sub_u32 s43, s43, s70
s_lshl_b32 s81, s4, 2
s_add_u32 s82, s81, s7
s_lshl_b32 s82, s82, 2
s_add_u32 s82, s82, s3
s_lshl_b32 s82, s82, 6
s_and_b32 s44, s6, 7
s_add_u32 s44, s82, s44
s_lshl_b32 s44, s44, 2
s_add_u32 s44, s44, 0x240000
s_lshr_b32 s82, s63, 1
s_add_u32 s82, s82, s81
s_lshl_b32 s82, s82, 2
s_add_u32 s82, s82, s68
s_lshl_b32 s45, s82, 8
s_add_u32 s45, s45, 0x240000
s_lshl_b32 s79, s68, 6
s_lshl_b32 s81, s4, 3
s_lshl_b32 s82, s7, 1
s_add_u32 s81, s81, s82
s_add_u32 s81, s81, s69
s_lshl_b32 s81, s81, 5
s_add_u32 s81, s81, s6
s_lshl_b32 s81, s81, 12
s_and_b32 s82, s68, 1
s_lshl_b32 s82, s82, 11
s_add_u32 s46, s81, s82
s_lshl_b32 s81, s63, 1
s_add_u32 s81, s81, s69
s_lshl_b32 s81, s81, 17
s_lshl_b32 s82, s4, 11
s_add_u32 s81, s81, s82
s_lshl_b32 s82, s62, 7
s_add_u32 s81, s81, s82
s_and_b32 s82, s68, 1
s_lshl_b32 s82, s82, 6
s_add_u32 s47, s81, s82
s_mov_b32 s48, 0x3e0293ee
"""
for l in P2.strip().split("\n"): e(l)
e(f"s_lshr_b32 s71, s63, {3 - NB.bit_length() + 1}")
e("s_lshl_b32 s82, s62, 1"); e("s_add_u32 s82, s82, s63")
for i in range(8):
    if OPT.get("rot",1): e(f"s_add_u32 s81, s82, {i}"); e("s_and_b32 s81, s81, 7"); e(f"s_lshl_b32 s{HD+i}, s81, 18")
    else: e(f"s_mov_b32 s{HD+i}, {i<<18}")
for f in issue(OPT.get("pro2",2)): g.run(f)

BT = [1, 2, 3, 0]
qacc = {}
i = 0
for bt in BT:
    for t in range(4):
        if bt == 1 and t < 2: qacc[bt, t] = ("a", 160 + 16 * t)
        else: qacc[bt, t] = ("v", 32 + 16 * i); i += 1
def R(x, n): return f"{x[0]}[{x[1]}:{x[1]+n-1}]"
KREG = {1: 0, 2: 32, 3: 0, 0: 32}
VREG = 192
def rdK(bt):
    kr = []
    for j in range(4):
        ad = 18 + j
        if bt: kr.append(f"v_add_u32 v{29+(j&1)}, s{40+bt}, v{18+j}"); ad = 29 + (j & 1)
        for h in range(2):
            kr.append(lazy(lambda j=j, h=h, ad=ad, bt=bt: f"ds_read_b128 {A(KREG[bt]+16*h+4*j)}, v{ad} offset:{g.slot['K',h]*4096}"))
    return kr
g.run(wait(("X",0,0),("W",0)))
for f in rdW(("W",0),128) + rdX(("X",0,0),0): g.run(f)
for bt in range(1,4):
    g.run(wait(("X",0,bt)))
    for f in rdX(("X",0,bt),16*bt): g.run(f)
cons = [("X",0,0),("W",0),("X",0,1),("X",0,2),("X",0,3)]
pass
qb = {}
def cvts(bt):
    r = []
    order = [2, 3, 0, 1] if bt == 1 else range(4)
    for t in order:
        k, b = qacc[bt, t]
        if k == "v":
            qb[bt, t] = b
            r += [f"v_cvt_pk_bf16_f32 v{b+j}, v{b+2*j}, v{b+2*j+1}" for j in range(8)]
        else:
            d = qacc[bt, t + 2][1] + 8; qb[bt, t] = d
            for j in range(8):
                tm = 1 + 2 * (j % 4)
                r += [f"v_accvgpr_read_b32 v{tm}, a{b+2*j}", f"v_accvgpr_read_b32 v{tm+1}, a{b+2*j+1}",
                      f"v_cvt_pk_bf16_f32 v{d+j}, v{tm}, v{tm+1}"]
    return r
for s in range(16):
    st, ks = s // 4, s % 4
    if s == 14:
        g.run(wait(("K",0),("K",1))); e("s_barrier")
    e("s_waitcnt lgkmcnt(0)"); stamp(); rel(*cons); cons = []
    mf = [mfma(R(qacc[bt,t],16), A(128+16*(s&1)+4*t), A(64*(st&1)+16*bt+4*ks), s == 0) for bt in BT for t in range(4)]
    bs = OPT.get("bs", 1)
    if s == 8: e("buffer_load_dword v30, off, s[64:67], s79 sc1"); g.last["NON"] = g.vm
    if s == 12:
        g.run(wait("NON"))
        for l in ["v_readfirstlane_b32 s83, v30", "s_cmp_lg_u32 s83, 0", "s_cbranch_scc1 L_gotn", "s_mov_b32 s82, 0"]: e(l)
        g.raw("L_spinn:")
        for l in ["s_sleep 8", "buffer_load_dword v30, off, s[64:67], s79 sc1", "s_add_u32 s82, s82, 1", "s_waitcnt vmcnt(0)",
                  "v_readfirstlane_b32 s83, v30", "s_cmp_lg_u32 s83, 0", "s_cbranch_scc1 L_gotn",
                  "s_cmp_lt_u32 s82, 0x4000", "s_cbranch_scc1 L_spinn"]: g.raw("    " + l)
        g.raw("L_gotn:")
    if BST and B0 <= s < B0 + NB * bs and (s - B0) % bs == 0:
        e(f"s_cmp_lg_u32 s71, {(s-B0)//bs}"); e(f"s_cbranch_scc1 L_nb{s}")
        v0 = g.vm
        for i in range(4):
            for f in item_ops(("O",i)): g.run(f)
            g.last["O",i] = v0
        g.vm = v0; bpos.append(v0); g.raw(f"L_nb{s}:")
    dm = issue(OPT['maxissue'], reserve=(max(0, 4 - len(CONS[s])) if BST and s == B0-1 else (1 if s == 15 else 0)))
    cons = CONS[s]; rd = []
    for it in cons:
        if it == cons[0] or s < 4: rd.append(wait(*(cons if s >= 4 else [it])))
        if it[0] == "W": rd += rdW(it, 128+16*(it[1]&1))
        elif it[0] == "X": rd += rdX(it, 64*(it[1]&1)+16*it[2])
        elif it[0] == "V": rd += rdX(it, VREG+32*it[1]+16*it[2])
    plans = [spread(dm, 0, 8, 16) if dm else [[]]*16, spread(rd, 8 if len(rd) < 16 else 5, 14, 16) if rd else [[]]*16]
    if s >= 14: plans.append(spread(rdK(BT[s-14]), 0, 8, 16))
    if s == 15: plans.append(spread(cvts(1), 7, 16, 16))
    block(mf, *plans)
pass
SOWN = qacc[2, 0][1]
sacc = {1: ("a",64), 2: ("a",80), 3: ("a",96), 0: ("v",SOWN)}
ex = {}
def wrpart(bt, src):
    ex[bt] = g.free.pop(0)
    return [f"ds_write_b128 v28, {A(src+4*q)} offset:{ex[bt]*4096+q*1024}" for q in range(4)]
for n, bt in enumerate(BT):
    e("s_waitcnt lgkmcnt(0)"); stamp(); rel(*cons); cons = []
    mf = [mfma(R(sacc[bt],16), A(KREG[bt]+8*t+4*m), V(qb[bt,t]+4*m), t == 0 and m == 0) for t in range(4) for m in range(2)]
    plans = []
    if n < 3: plans.append(spread(cvts(BT[n+1]), 0, 8, 8))
    if n > 0: plans.append(spread(wrpart(BT[n-1], sacc[BT[n-1]][1]), 3, 7, 8))
    if n == 0:
        cons = [("O",0),("O",1)]
        plans.append(spread([wait(*cons)] + rdO(cons[0],128) + rdO(cons[1],144), 1, 7, 8))
    if n in (1, 2): plans.append(spread(rdK(BT[n+1]), 0, 6, 8))
    block(mf, *plans)
e("s_waitcnt lgkmcnt(0)")
e("s_barrier"); rel(("K",0),("K",1))
pass
T0 = 208
sm1 = []
for bt in (1,2,3):
    sm1.append(f"v_add_u32 v{bt}, s{40+bt}, v28")
    sm1 += [f"ds_read_b128 {V(T0+16*(bt-1)+4*q)}, v{bt} offset:{ex[bt]*4096+q*1024}" for q in range(4)]
S = SOWN
sm = ["s_waitcnt lgkmcnt(0)"]
for j in range(16): sm.append(f"v_add_f32 v{T0+j}, v{T0+j}, v{T0+16+j}")
for j in range(16): sm.append(f"v_add_f32 v{S+j}, v{S+j}, v{T0+32+j}")
for j in range(16): sm.append(f"v_add_f32 v{S+j}, v{S+j}, v{T0+j}")
sm += [f"v_max3_f32 v1, v{S}, v{S+1}, v{S+2}", f"v_max3_f32 v2, v{S+3}, v{S+4}, v{S+5}"]
for j in range(6,16,4):
    sm.append(f"v_max3_f32 v1, v1, v{S+j}, v{S+j+1}")
    if j+2 < 16: sm.append(f"v_max3_f32 v2, v2, v{S+j+2}, v{S+j+3}")
sm += ["v_max_f32 v1, v1, v2", "v_mov_b32 v2, v1", "v_permlane32_swap_b32 v1, v2", "v_max_f32 v1, v1, v2", "v_mul_f32 v1, s48, v1"]
for j in range(16): sm.append(f"v_fma_f32 v{S+j}, v{S+j}, s48, -v1")
for j in range(16): sm.append(f"v_exp_f32 v{S+j}, v{S+j}")
sm += [f"v_add_f32 v1, v{S}, v{S+1}", f"v_add_f32 v2, v{S+2}, v{S+3}"]
for j in range(4,16,2): sm += [f"v_add_f32 v1, v1, v{S+j}", f"v_add_f32 v2, v2, v{S+j+1}"]
sm += ["v_add_f32 v1, v1, v2", "v_mov_b32 v2, v1", "v_permlane32_swap_b32 v1, v2", "v_add_f32 v1, v1, v2", "v_rcp_f32 v1, v1",
       "v_lshlrev_b32 v3, 4, v0"]
for j in range(16): sm.append(f"v_mul_f32 v{S+j}, v{S+j}, v1")
for j in range(8): sm.append(f"v_cvt_pk_bf16_f32 v{S+j}, v{S+2*j}, v{S+2*j+1}")
def pst(m):
    def f():
        e(f"buffer_store_dwordx4 {V(S+4*m)}, v3, s[28:31], s46 offen offset:{m*1024} sc1"); g.last["PST"] = g.vm
    return f
sm += [pst(0), pst(1)]

ub = {0:(96,128), 1:(160,32), 2:(96,128), 3:(160,32), 4:(192,224), 5:(96,128), 6:(64,32), 7:(224,128)}
ustore = {0:("a",64), 1:("a",96), 2:("a",0)}
def utile(h, tt): return ub[h][tt>>1] + 16*(tt&1)
def ucvt(h):
    r = []; d = ub[h][0]
    for tt in range(4):
        b = utile(h, tt)
        for j in range(8):
            r.append(f"v_cvt_pk_bf16_f32 v{d+8*tt+j}, v{b+2*j}, v{b+2*j+1}")
            if h in ustore: r.append(f"v_accvgpr_write_b32 a{ustore[h][1]+8*tt+j}, v{d+8*tt+j}")
    if h not in ustore: ustore[h] = ("v", d)
    return r
NSM = 3
smparts = [sm[i*len(sm)//NSM:(i+1)*len(sm)//NSM] for i in range(NSM)]
pend_cvt = []
for s in range(16):
    h, half = s // 2, s % 2
    e("s_waitcnt lgkmcnt(0)"); stamp(); rel(*cons)
    if s == NSM + OPT.get('sig',1):
        g.run(wait("PST")); e("s_barrier")
        for bt in (1,2,3): g.free.append(ex[bt])
        for l in ["s_cmp_lg_u32 s68, 0", "s_cbranch_scc1 L_nosig", "s_mov_b64 exec, 1", "v_mov_b32 v1, s83"]: e(l)
        g.raw("    buffer_store_dword v1, off, s[28:31], s44 sc1"); e("s_mov_b64 exec, -1"); g.raw("L_nosig:"); e("s_nop 3")
        pass
    if s == OPT['pollstep']:
        e("v_and_b32 v3, 7, v0"); e("v_lshlrev_b32 v3, 2, v3"); e("buffer_load_dword v2, v3, s[28:31], s45 offen sc1"); g.last["POLL"] = g.vm
    if s == OPT['pollstep'] + 2:
        g.run(wait("POLL"))
        for l in ["v_cmp_ne_u32 vcc, s83, v2", "s_nop 1", "s_cmp_eq_u64 vcc, 0", "s_cbranch_scc1 L_ready", "s_mov_b32 s82, 0"]: e(l)
        g.raw("L_spin:")
        for l in ["s_sleep 8", "buffer_load_dword v2, v3, s[28:31], s45 offen sc1", "s_add_u32 s82, s82, 1", "s_waitcnt vmcnt(0)",
                  "v_cmp_ne_u32 vcc, s83, v2", "s_nop 1", "s_cmp_eq_u64 vcc, 0", "s_cbranch_scc1 L_ready",
                  "s_cmp_lt_u32 s82, 0x4000", "s_cbranch_scc1 L_spin"]: g.raw("    " + l)
        g.raw("L_ready:"); gate["P"] = True
        for l in ["s_lshl_b32 s81, s69, 11", "v_add_u32 v18, s81, v28", "v_xor_b32 v19, 0x800, v18"]: e(l)
        pass
    wb = 128 + 32 * (s & 1)
    mf = [mfma(V(utile(h,2*b+nt),16), A(VREG+32*b+16*half+4*k), A(wb+8*k+4*nt), half == 0 and k == 0)
          for k in range(4) for b in range(2) for nt in range(2)]
    dm = issue(OPT['maxissue'] + 1)
    wn = 128 + 32 * ((s + 1) & 1)
    if s < 15:
        cons = [("O",2*s+2),("O",2*s+3)]; rd = [wait(*cons)] + rdO(cons[0], wn) + rdO(cons[1], wn+16)
    else:
        cons = [("P",0),("P",1)]; rd = [wait(*cons)] + rdP(cons[0], wn) + rdP(cons[1], wn+16)
    plans = [spread(dm, 0, 8, 16) if dm else [[]]*16, spread(rd, 7, 14, 16)]
    if half == 0 and h > 0: pend_cvt = ucvt(h-1)
    if pend_cvt:
        n = len(pend_cvt) // 2 if half == 0 else len(pend_cvt)
        plans.append(spread(pend_cvt[:n], 3 if half == 0 else 0, 16, 16)); pend_cvt = pend_cvt[n:]
    if s == 0: plans = [spread(sm1, 0, 3, 16)] + plans + [spread(smparts[0], 5, 16, 16)]
    elif s < NSM: plans.append(spread(smparts[s], 0, 16, 16))
    block(mf, *plans)
pass
OOWN = 32
oacc = {0: ("v",OOWN), 1: ("a",192), 2: ("a",208), 3: ("a",224)}
for s in range(4):
    e("s_waitcnt lgkmcnt(0)"); stamp(); rel(*cons)
    wb = 128 + 32 * (s & 1); wn = 128 + 32 * ((s + 1) & 1)
    plans = []
    if s == 0: plans.append(spread(ucvt(7), 3, 16, 16))
    mf = []
    TT = [1,2,3,0] if s == 3 else [0,1,2,3]
    seq = [(hh,tt,m) for tt in TT for hh in range(2) for m in range(2)] if s == 3 else [(hh,tt,m) for hh in range(2) for m in range(2) for tt in TT]
    for hh, tt, m in seq:
        u = ustore[2*s+hh]
        mf.append(mfma(R(oacc[tt],16), R((u[0],u[1]+8*tt+4*m),4), A(wb+16*hh+8*(tt>>1)+4*m), s == 0 and hh == 0 and m == 0))
    dm = issue(99)
    if dm: plans.append(spread(dm, 0, 8, 16))
    if s < 3:
        cons = [("P",2*s+2),("P",2*s+3)]
        plans.append(spread([wait(*cons)] + rdP(cons[0], wn) + rdP(cons[1], wn+16), 8, 14, 16))
    else:
        for tt in (1,2): plans.append(spread(wrpart(tt, oacc[tt][1]), 4*tt+6, 16, 16))
        adr = ["v_and_b32 v4, 31, v0", "v_lshrrev_b32 v5, 5, v0", "v_lshlrev_b32 v4, 12, v4", "v_lshl_add_u32 v4, v5, 5, v4"]
        adr += [f"v_add_u32 v{tt}, s{40+tt}, v28" for tt in (1,2,3)]
        plans.append(spread(adr, 0, 7, 16))
    block(mf, *plans)
for l in wrpart(3, oacc[3][1]): e(l)
e("s_waitcnt lgkmcnt(0)"); stamp(); e("s_barrier")
T0 = 64
for tt in (1,2,3):
    for q in range(4): e(f"ds_read_b128 {V(T0+16*(tt-1)+4*q)}, v{tt} offset:{ex[tt]*4096+q*1024}")
e("s_waitcnt lgkmcnt(0)"); stamp()
S = OOWN
for j in range(16): e(f"v_add_f32 v{T0+j}, v{T0+j}, v{T0+16+j}")
for j in range(16): e(f"v_add_f32 v{S+j}, v{S+j}, v{T0+32+j}")
for j in range(16): e(f"v_add_f32 v{S+j}, v{S+j}, v{T0+j}")
for j in range(8): e(f"v_cvt_pk_bf16_f32 v{S+j}, v{S+2*j}, v{S+2*j+1}")
for m in range(2): e(f"buffer_store_dwordx4 {V(S+4*m)}, v4, s[32:35], s47 offen offset:{16*m}")
if OPT['stamp']:
    e("s_waitcnt vmcnt(0) lgkmcnt(0)"); stamp(); e("s_memrealtime s[38:39]"); e("s_waitcnt lgkmcnt(0)"); stamp()
    for l in ["v_writelane_b32 v31, s86, 1", "v_writelane_b32 v31, s88, 2", "v_writelane_b32 v31, s36, 0", "v_writelane_b32 v31, s38, 63",
              f"s_mov_b32 s81, {nst[0]-1}", "v_writelane_b32 v31, s81, 62",
              "s_lshl_b32 s82, s2, 2", "s_add_u32 s82, s82, s68", "s_lshl_b32 s82, s82, 8", "s_add_u32 s82, s82, 0x200000",
              "v_lshlrev_b32 v1, 2, v0", "buffer_store_dword v31, v1, s[28:31], s82 offen"]: e(l)
assert nxt[0] == len(stream)

hdr = open(f"cdna_kernels/{NAME}.s.ref").read().split("; Override launch")[0]
txt = hdr + f"""; @launch grid=(256,1,1) block=(256,1,1) lds=163840
.amdgcn_target "amdgcn-amd-amdhsa--gfx950"
.text
.globl {NAME}_kernel
.p2align 8
.type {NAME}_kernel,@function
{NAME}_kernel:
""" + "\n".join(g.out) + f"""
L_end:
    s_endpgm
.section .rodata,"a"
.p2align 6
.amdhsa_kernel {NAME}_kernel
  .amdhsa_next_free_vgpr 512
  .amdhsa_next_free_sgpr 102
  .amdhsa_accum_offset 256
  .amdhsa_group_segment_fixed_size 0
  .amdhsa_kernarg_size 104
  .amdhsa_user_sgpr_count 2
  .amdhsa_user_sgpr_kernarg_segment_ptr 1
  .amdhsa_system_sgpr_workgroup_id_x 1
.end_amdhsa_kernel
"""
open(sys.argv[1], "w").write(txt)
```

```python
import re, sys
NAME = "concat_heads__gqa_block_cached__gqa_block_cached__near_ridge"
OPT = dict(stamp=0, nslots=10, pollstep=9, maxissue=3)
for a in sys.argv[2:]:
    k, v = a.split("="); OPT[k] = int(v)
AREA = 40960

def regs(tok):
    tok = tok.strip()
    m = re.fullmatch(r"-?([va])\[(\d+):(\d+)\]", tok)
    if m: return [m.group(1) + str(i) for i in range(int(m.group(2)), int(m.group(3)) + 1)]
    m = re.fullmatch(r"-?([va])(\d+)", tok)
    if m: return [m.group(1) + m.group(2)]
    return []

class Gen:
    def __init__(s):
        s.out = []; s.ws = 0
        s.mf_w = {}; s.va_w = {}; s.mf_c = {}; s.tr_w = {}; s.st_r = {}
        s.vm = 0
        s.free = list(range(OPT['nslots'])); s.slot = {}; s.last = {}
        s.pend_lds = set()
    def raw(s, t): s.out.append(t)
    def e(s, t):
        op = t.split()[0]
        if OPT.get('nomfma') and op.startswith("v_mfma"): return
        if OPT.get('nods') and op.startswith("ds_read"): return
        if OPT.get('nodma') and " lds" in t and s.vm > 40: s.vm += 1; return
        ops = [x.strip() for x in t[len(op):].split(",")]
        ops = [o.split()[0] if o else o for o in ops]
        need = 0
        def chk(tab, rs, n):
            nonlocal need
            for r in rs:
                if r in tab: need = max(need, n - (s.ws - tab[r]))
        if op.startswith("v_mfma"):
            d, a, b, c = regs(ops[0]), regs(ops[1]), regs(ops[2]), regs(ops[3])
            chk(s.va_w, a + b + c, 2); chk(s.mf_w, a + b, 12)
            if c != d: chk(s.mf_w, c + d, 12)
            rd, wr = a + b + c, d
        elif op.startswith("v_"):
            wr = regs(ops[0]); rd = sum((regs(o) for o in ops[1:]), [])
            if op.startswith("v_fmac") or op.startswith("v_permlane"): rd += wr
            if op.startswith("v_permlane"): wr = wr + regs(ops[1]); chk(s.va_w, rd, 2)
            if op.startswith("v_readfirstlane"): chk(s.va_w, rd, 1)
            chk(s.mf_w, rd + wr, 12); chk(s.mf_c, wr, 7); chk(s.st_r, wr, 2)
            if not re.match(r"v_(exp|rcp|log)", op): chk(s.tr_w, rd, 1)
        elif op.startswith("ds_read") or (op.startswith("buffer_load") and " lds" not in t):
            wr = regs(ops[0]); rd = regs(ops[1]); chk(s.mf_w, rd + wr, 12); chk(s.st_r, wr, 1)
        elif op.startswith("ds_write") or op.startswith("buffer_"):
            wr = []; rd = sum((regs(o) for o in ops[:2]), []); chk(s.mf_w, rd, 12)
        else: rd, wr = [], []
        for r in rd + wr:
            assert r not in s.pend_lds or op.startswith("ds_read") and r not in rd and False, ("unwaited lds reg", t)
        if need > 0:
            s.out.append(f"    s_nop {need-1}"); s.ws += need
            if OPT.get('verbose'): print("nop", need, "before", t, file=sys.stderr)
        s.out.append("    " + t); s.ws += 1
        if op == "s_nop": s.ws += int(ops[0])
        if op.startswith("v_mfma"):
            for r in wr: s.mf_w[r] = s.ws
            for r in regs(ops[3]): s.mf_c[r] = s.ws
        elif op.startswith("v_"):
            for r in wr:
                s.va_w[r] = s.ws; s.mf_w.pop(r, None)
                if re.match(r"v_(exp|rcp|log)", op): s.tr_w[r] = s.ws
                else: s.tr_w.pop(r, None)
        if op.startswith("ds_read"): s.pend_lds |= set(wr)
        if op.startswith("s_waitcnt") and "lgkmcnt(0)" in t: s.pend_lds = set()
        if op.startswith("buffer_store"):
            for r in regs(ops[0]): s.st_r[r] = s.ws
        if op.startswith("buffer_"): s.vm += 1
    def run(s, f):
        if callable(f): f()
        else: s.e(f)
g = Gen(); e = g.e

stream = [("X",0,1),("W",0),("X",0,2),("X",0,3),("X",0,0)]
CONS = {}
for st in range(14):
    CONS[st] = [("W",st+1)] + ([("X", st//4+1, st%4)] if st < 12 else [])
CONS[13].append(("W",15))
if OPT.get("touch",1): CONS[OPT.get("tat",2)] += [("T",),("TV",)]
for st in range(14):
    stream += CONS[st]
    if st == 11: stream += [("K",0),("K",1)]
VI = [("V",b,h) for b in range(2) for h in range(2)]
stream += [("O",i) for i in range(4)] + VI + [("O",i) for i in range(4,32)] + [("P",i) for i in range(8)]
bpos = []; NB = 8
nxt = [0]; gate = {"P": False}
SOFF = "s80"
STX, STW, HD = 49, 53, 90
ORD = {0:[[0,1,2,3]]*4, 1:[[0,1,2,3],[1,2,3,0],[2,3,0,1],[3,0,1,2]], 2:[[0,1,2,3],[0,2,3,1],[1,0,3,2],[1,3,2,0]], 3:[[0,1,2,3],[0,1,2,3],[1,0,3,2],[1,0,3,2]]}[OPT.get("ord",1)]
def item_ops(it):
    k = it[0]
    def head():
        if it not in g.slot: g.slot[it] = g.free.pop(0)
        sl = g.slot[it]
        e(f"s_add_u32 m0, s70, {sl*4096}")
        if k == "X": e(f"s_add_u32 {SOFF}, s{72+it[2]}, s{STX+it[1]}")
        elif k == "W": e(f"s_add_u32 {SOFF}, s{STW+it[1]//4}, {it[1]%4*16*8192}")
        elif k == "K": e(f"s_add_u32 {SOFF}, s76, {it[1]*128}")
        elif k == "T": e("s_and_b32 s81, s6, 7"); e("s_lshl_b32 s81, s81, 10"); e(f"s_add_u32 {SOFF}, s76, s81"); e("v_lshlrev_b32 v29, 4, v0")
        elif k == "TV":
            for l in ["s_and_b32 s81, s62, 1", "s_lshl_b32 s81, s81, 7", "s_bitcmp1_b32 s62, 1", "s_cselect_b32 s82, s78, s77", f"s_add_u32 {SOFF}, s82, s81"]: e(l)
        elif k == "V": e(f"s_add_u32 {SOFF}, s{77+it[1]}, {it[2]*128}")
        elif k == "O": e(f"s_add_u32 {SOFF}, s{HD+it[1]//4}, {it[1]%4*32*2048}")
        elif k == "P": e(f"s_lshr_b32 {SOFF}, s{HD+it[1]}, 6")
    vb, srd = dict(X=(1,8), W=(5,12), K=(9,16), V=(9,20), O=(13,24), P=(17,28), T=(29,16), TV=(9,20))[k]
    def dma(i):
        def f():
            if i == 0: head()
            v = vb if k == "P" else vb + i
            fl = " sc1" if k == "P" else ""
            e(f"buffer_load_dwordx4 v{v}, s[{srd}:{srd+3}], {SOFF} offen offset:{i*1024}{fl} lds")
            g.last[it] = g.vm
        return f
    return [dma(i) for i in range(1 if k == "T" else 4)]
def issue(n, reserve=0):
    r = []; avail = len(g.free) - reserve
    while n > 0 and avail > 0 and nxt[0] < len(stream):
        it = stream[nxt[0]]
        if it[0] == "P" and not gate["P"]: break
        r += item_ops(it); nxt[0] += 1; n -= 1; avail -= 1
    return r
def wait(*its):
    def f():
        l = max(g.last[it] for it in its); n = g.vm - l
        cl = [c for c, p in enumerate(bpos) if p >= l and not (its[0][0] == "O" and its[0][1] < 4)]
        if cl and n < 63:
            lab = f"L_w{len(g.out)}"
            e(f"s_sub_u32 s81, s71, {cl[0]}"); e(f"s_cmp_le_u32 s81, {cl[-1]-cl[0]}"); e(f"s_waitcnt vmcnt({min(n+16,63)})")
            e(f"s_cbranch_scc1 {lab}"); e(f"s_waitcnt vmcnt({n})"); g.raw(lab + ":")
        else: e(f"s_waitcnt vmcnt({min(n,63)})")
    return f
def rel(*its):
    for it in its: g.free.append(g.slot.pop(it))
def A(b, n=4): return f"a[{b}:{b+n-1}]"
def V(b, n=4): return f"v[{b}:{b+n-1}]"
def lazy(fn): return lambda: e(fn())
def rdX(it, dst, addr=18):
    return [lazy(lambda ks=ks: f"ds_read_b128 {A(dst+4*ks)}, v{addr+ks} offset:{g.slot[it]*4096}") for ks in range(4)]
def rdW(it, dst):
    return [lazy(lambda t=t, rd=rd: f"ds_read_b64_tr_b16 {A(dst+4*t+2*rd,2)}, v{22+t} offset:{g.slot[it]*4096+rd*1024}")
            for t in range(4) for rd in range(2)]
def rdO(it, dst):
    return [lazy(lambda k=k, nt=nt, rd=rd: f"ds_read_b64_tr_b16 {A(dst+8*k+4*nt+2*rd,2)}, v{26+nt} offset:{g.slot[it]*4096+k*2048+rd*512}")
            for k in range(2) for nt in range(2) for rd in range(2)]
def rdP(it, dst):
    return [lazy(lambda b=b, m=m: f"ds_read_b128 {A(dst+8*b+4*m)}, v{18+b} offset:{g.slot[it]*4096+m*1024}")
            for b in range(2) for m in range(2)]
def spread(lst, lo, hi, n):
    r = [[] for _ in range(n)]
    for i, f in enumerate(lst): r[lo + i * (hi - lo) // len(lst)].append(f)
    return r
def block(mf, *plans):
    for i, m in enumerate(mf):
        e(m)
        for p in plans:
            for f in p[i]: g.run(f)
def mfma(d, a, b, first): return f"v_mfma_f32_32x32x16_bf16 {d}, {a}, {b}, {'0' if first else d}"
nst = [0]
def stamp(fine=False):
    if OPT['stamp']:
        if nst[0] >= 3: e(f"v_writelane_b32 v31, s84, {nst[0]}")
        nst[0] += 1
        r = {1: 86, 2: 88}.get(nst[0], 84)
        e(f"s_memtime s[{r}:{r+1}]")
P = """
s_cmp_ge_u32 s2, 256
s_cbranch_scc1 L_end
s_load_dwordx16 s[36:51], s[0:1], 0
s_load_dwordx8 s[52:59], s[0:1], 64
s_load_dwordx2 s[60:61], s[0:1], 96
s_memrealtime s[98:99]
v_lshrrev_b32 v29, 6, v0
v_and_b32 v0, 63, v0
v_readfirstlane_b32 s68, v29
s_and_b32 s3, s2, 3
s_bfe_u32 s4, s2, 0x10002
s_lshr_b32 s5, s2, 3
s_and_b32 s6, s5, 7
s_lshl_b32 s7, s3, 3
s_add_u32 s6, s6, s7
s_lshr_b32 s7, s5, 3
s_and_b32 s62, s5, 3
s_lshl_b32 s63, s3, 2
s_add_u32 s62, s62, s63
s_lshr_b32 s63, s5, 2
s_mul_i32 s70, s68, 40960
SAME
v_lshrrev_b32 v29, 3, v0
v_and_b32 v30, 7, v0
v_lshrrev_b32 v31, 4, v0
v_xor_b32 v9, v30, v31
v_xor_b32 v10, 4, v9
v_lshlrev_b32 v9, 4, v9
v_lshlrev_b32 v10, 4, v10
s_lshl_b32 s81, s7, 18
s_lshl_b32 s82, s68, 9
s_add_u32 s81, s81, s82
v_lshl_add_u32 v1, v29, 11, s81
v_add_u32 v2, v1, v10
v_add_u32 v1, v1, v9
v_add_u32 v2, 15360, v2
v_add_u32 v3, 30720, v1
v_add_u32 v4, 30720, v2
v_and_b32 v5, 15, v0
v_lshlrev_b32 v6, 2, v31
v_xor_b32 v5, v5, v6
v_lshlrev_b32 v5, 4, v5
v_lshl_add_u32 v5, v31, 13, v5
s_lshl_b32 s81, s68, 21
s_lshl_b32 s82, s6, 8
s_add_u32 s81, s81, s82
v_add_u32 v5, s81, v5
v_add_u32 v6, 31744, v5
v_add_u32 v7, 63488, v5
v_add_u32 v8, 95232, v5
s_lshl_b32 s72, s68, 16
s_xor_b32 s73, s72, 0x10000
s_xor_b32 s74, s72, 0x20000
s_xor_b32 s75, s72, 0x30000
s_mov_b32 s10, 0x100000
s_mov_b32 s11, 0x20000
s_mov_b32 s14, 0x800000
s_mov_b32 s15, 0x20000
s_cmp_eq_u32 s4, 0
s_waitcnt lgkmcnt(0)
s_cselect_b32 s8, s36, s46
s_cselect_b32 s9, s37, s47
s_cselect_b32 s12, s42, s52
s_cselect_b32 s13, s43, s53
s_cselect_b32 s16, s38, s48
s_cselect_b32 s17, s39, s49
s_cselect_b32 s20, s40, s50
s_cselect_b32 s21, s41, s51
s_cselect_b32 s24, s44, s54
s_cselect_b32 s25, s45, s55
"""
stamp()
P = P.replace("SAME\n", {0:"", 1:"s_mov_b32 s6, 0\ns_mov_b32 s62, 0\n", 2:"s_and_b32 s6, s6, 1\ns_and_b32 s62, s62, 1\n"}[OPT.get('same',0)])
for l in P.strip().split("\n"): e(l)
if OPT['stamp']: e("s_memrealtime s[36:37]")
for l in ["s_mov_b32 s28, s60", "s_mov_b32 s29, s61", "s_mov_b32 s32, s56", "s_mov_b32 s33, s57", "s_mov_b32 s64, s58", "s_mov_b32 s65, s59"]: e(l)
for l in ["s_mov_b32 s66, 256", "s_mov_b32 s67, 0x20000", "s_or_b32 s81, s2, s68", "s_cbranch_scc1 L_nonon", "s_or_b32 s98, s98, 1", "v_mov_b32 v18, s98",
          "v_lshlrev_b32 v19, 6, v0", "s_mov_b64 exec, 15"]: e(l)
g.raw("    buffer_store_dword v18, v19, s[64:67], 0 offen sc1"); e("s_mov_b64 exec, -1"); g.raw("L_nonon:")
pk = sum(ORD[c][i] << (8*c + 2*i) for c in range(4) for i in range(4))
e("s_add_u32 s81, s6, s7"); e("s_and_b32 s81, s81, 3"); e("s_lshl_b32 s81, s81, 3"); e(f"s_lshr_b32 s81, {hex(pk)}, s81")
for i in range(4):
    e(f"s_bfe_u32 s82, s81, {hex(0x20000 | 2*i)}"); e(f"s_lshl_b32 s{STX+i}, s82, 7"); e(f"s_lshl_b32 s{STW+i}, s82, 19")
stamp()
for f in issue(5): g.run(f)
P2 = """
s_mov_b32 s18, 0x80000
s_mov_b32 s19, 0x20000
s_mov_b32 s22, 0x80000
s_mov_b32 s23, 0x20000
s_mov_b32 s26, 0x800000
s_mov_b32 s27, 0x20000
s_mov_b32 s30, 0x242000
s_mov_b32 s31, 0x20000
s_mov_b32 s34, 0x200000
s_mov_b32 s35, 0x20000
v_and_b32 v13, 1, v31
v_lshlrev_b32 v13, 2, v13
v_xor_b32 v13, v13, v30
v_lshlrev_b32 v13, 4, v13
v_lshl_add_u32 v13, v29, 11, v13
s_lshl_b32 s81, s68, 21
s_lshl_b32 s82, s62, 7
s_add_u32 s81, s81, s82
v_add_u32 v13, s81, v13
v_add_u32 v14, 15360, v13
v_add_u32 v15, 30720, v13
v_add_u32 v16, 46080, v13
v_lshl_add_u32 v9, v29, 8, v9
v_lshl_add_u32 v10, v29, 8, v10
v_add_u32 v10, 1024, v10
v_add_u32 v11, 2048, v9
v_add_u32 v12, 2048, v10
s_lshl_b32 s76, s7, 2
s_add_u32 s76, s76, s68
s_lshl_b32 s76, s76, 15
s_lshl_b32 s81, s3, 13
s_add_u32 s76, s76, s81
s_lshr_b32 s69, s68, 1
s_lshl_b32 s77, s63, 1
s_add_u32 s77, s77, s69
s_lshl_b32 s77, s77, 15
s_lshl_b32 s81, s68, 13
s_add_u32 s77, s77, s81
s_xor_b32 s78, s77, 0x8000
s_lshl_b32 s81, s4, 3
s_add_u32 s81, s81, s63
s_lshl_b32 s81, s81, 17
s_lshl_b32 s82, s68, 15
s_add_u32 s81, s81, s82
v_lshl_add_u32 v17, v0, 4, s81
v_lshl_add_u32 v28, v0, 4, s70
v_and_b32 v29, 31, v0
v_lshrrev_b32 v30, 5, v0
v_bfe_u32 v31, v0, 1, 3
v_xor_b32 v31, v31, v30
v_lshl_add_u32 v29, v29, 7, s70
v_lshl_add_u32 v18, v31, 4, v29
v_xor_b32 v19, 2, v31
v_lshl_add_u32 v19, v19, 4, v29
v_xor_b32 v20, 4, v31
v_lshl_add_u32 v20, v20, 4, v29
v_xor_b32 v21, 6, v31
v_lshl_add_u32 v21, v21, 4, v29
v_bfe_u32 v29, v0, 2, 2
v_lshl_add_u32 v30, v30, 3, v29
v_bfe_u32 v31, v0, 1, 1
v_lshlrev_b32 v31, 3, v31
v_add_u32 v31, s70, v31
v_lshl_add_u32 v26, v30, 7, v31
v_lshl_add_u32 v31, v30, 8, v31
v_and_b32 v30, 16, v0
v_add_u32 v26, v26, v30
v_lshl_add_u32 v31, v30, 1, v31
v_and_b32 v30, 1, v0
v_lshl_add_u32 v26, v30, 5, v26
v_lshl_add_u32 v31, v30, 4, v31
v_lshl_add_u32 v22, v29, 6, v31
v_xor_b32 v23, 1, v29
v_lshl_add_u32 v23, v23, 6, v31
v_xor_b32 v24, 2, v29
v_lshl_add_u32 v24, v24, 6, v31
v_xor_b32 v25, 3, v29
v_lshl_add_u32 v25, v25, 6, v31
v_lshrrev_b32 v29, 1, v29
s_and_b32 s81, s68, 1
v_xor_b32 v29, s81, v29
v_xor_b32 v30, 1, v29
v_lshl_add_u32 v27, v30, 6, v26
v_lshl_add_u32 v26, v29, 6, v26
s_xor_b32 s81, s68, 1
s_mul_i32 s41, s81, 40960
s_sub_u32 s41, s41, s70
s_xor_b32 s81, s68, 2
s_mul_i32 s42, s81, 40960
s_sub_u32 s42, s42, s70
s_xor_b32 s81, s68, 3
s_mul_i32 s43, s81, 40960
s_sub_u32 s43, s43, s70
s_lshl_b32 s81, s4, 2
s_add_u32 s82, s81, s7
s_lshl_b32 s82, s82, 2
s_add_u32 s82, s82, s3
s_lshl_b32 s82, s82, 6
s_and_b32 s44, s6, 7
s_add_u32 s44, s82, s44
s_lshl_b32 s44, s44, 2
s_add_u32 s44, s44, 0x240000
s_lshr_b32 s82, s63, 1
s_add_u32 s82, s82, s81
s_lshl_b32 s82, s82, 2
s_add_u32 s82, s82, s68
s_lshl_b32 s45, s82, 8
s_add_u32 s45, s45, 0x240000
s_lshl_b32 s79, s68, 6
s_lshl_b32 s81, s4, 3
s_lshl_b32 s82, s7, 1
s_add_u32 s81, s81, s82
s_add_u32 s81, s81, s69
s_lshl_b32 s81, s81, 5
s_add_u32 s81, s81, s6
s_lshl_b32 s81, s81, 12
s_and_b32 s82, s68, 1
s_lshl_b32 s82, s82, 11
s_add_u32 s46, s81, s82
s_lshl_b32 s81, s63, 1
s_add_u32 s81, s81, s69
s_lshl_b32 s81, s81, 17
s_lshl_b32 s82, s4, 11
s_add_u32 s81, s81, s82
s_lshl_b32 s82, s62, 7
s_add_u32 s81, s81, s82
s_and_b32 s82, s68, 1
s_lshl_b32 s82, s82, 6
s_add_u32 s47, s81, s82
s_mov_b32 s48, 0x3e0293ee
"""
for l in P2.strip().split("\n"): e(l)
e(f"s_lshr_b32 s71, s63, {3 - NB.bit_length() + 1}")
e("s_lshl_b32 s82, s62, 1"); e("s_add_u32 s82, s82, s63")
for i in range(8):
    if OPT.get("rot",1): e(f"s_add_u32 s81, s82, {i}"); e("s_and_b32 s81, s81, 7"); e(f"s_lshl_b32 s{HD+i}, s81, 18")
    else: e(f"s_mov_b32 s{HD+i}, {i<<18}")
for f in issue(OPT.get("pro2",1)): g.run(f)

BT = [1, 2, 3, 0]
qacc = {}
i = 0
for bt in BT:
    for t in range(4):
        if bt == 1 and t < 2: qacc[bt, t] = ("a", 160 + 16 * t)
        else: qacc[bt, t] = ("v", 32 + 16 * i); i += 1
def R(x, n): return f"{x[0]}[{x[1]}:{x[1]+n-1}]"
KREG = {1: 0, 2: 32, 3: 0, 0: 32}
VREG = 192
def rdK(bt):
    kr = []
    for j in range(4):
        ad = 18 + j
        if bt: kr.append(f"v_add_u32 v{29+(j&1)}, s{40+bt}, v{18+j}"); ad = 29 + (j & 1)
        for h in range(2):
            kr.append(lazy(lambda j=j, h=h, ad=ad, bt=bt: f"ds_read_b128 {A(KREG[bt]+16*h+4*j)}, v{ad} offset:{g.slot['K',h]*4096}"))
    return kr
g.run(wait(("X",0,1),("W",0)))
for f in rdW(("W",0),128) + rdX(("X",0,1),16): g.run(f)
cons = []
qb = {}
def cvts(bt):
    r = []
    order = [2, 3, 0, 1] if bt == 1 else range(4)
    for t in order:
        k, b = qacc[bt, t]
        if k == "v":
            qb[bt, t] = b
            r += [f"v_cvt_pk_bf16_f32 v{b+j}, v{b+2*j}, v{b+2*j+1}" for j in range(8)]
        else:
            d = qacc[bt, t + 2][1] + 8; qb[bt, t] = d
            for j in range(8):
                tm = 1 + 2 * (j % 4)
                r += [f"v_accvgpr_read_b32 v{tm}, a{b+2*j}", f"v_accvgpr_read_b32 v{tm+1}, a{b+2*j+1}",
                      f"v_cvt_pk_bf16_f32 v{d+j}, v{tm}, v{tm+1}"]
    return r
E16 = [[]]*16
def sp(l, lo, hi, n): return spread(l, lo, hi, n) if l else [[]]*n
def upto(it, extra=0):
    return max(0, stream.index(it) + 1 + extra - nxt[0])
WREG = lambda i: 192 if i == 15 else 128 + 16*(i & 1)
LA = OPT.get("la", 4)
for s in range(14):
    st, ks = s // 4, s % 4
    e("s_waitcnt lgkmcnt(0)"); stamp(); rel(*cons)
    mf = [mfma(R(qacc[bt,t],16), A(WREG(s)+4*t), A(64*(st&1)+16*bt+4*ks), s == 0) for bt in BT for t in range(4)]
    if s == 8: e("buffer_load_dword v30, off, s[64:67], s79 sc1"); g.last["NON"] = g.vm
    if s == 12:
        g.run(wait("NON"))
        for l in ["v_readfirstlane_b32 s83, v30", "s_cmp_lg_u32 s83, 0", "s_cbranch_scc1 L_gotn", "s_mov_b32 s82, 0"]: e(l)
        g.raw("L_spinn:")
        for l in ["s_sleep 8", "buffer_load_dword v30, off, s[64:67], s79 sc1", "s_add_u32 s82, s82, 1", "s_waitcnt vmcnt(0)",
                  "v_readfirstlane_b32 s83, v30", "s_cmp_lg_u32 s83, 0", "s_cbranch_scc1 L_gotn",
                  "s_cmp_lt_u32 s82, 0x4000", "s_cbranch_scc1 L_spinn"]: g.raw("    " + l)
        g.raw("L_gotn:")
    cons = list(CONS[s])
    n = min(upto(cons[-1], LA), upto(("W",15)))
    if n == 0 or nxt[0] + n > stream.index(("W",15)): n = max(n, min(OPT.get("opace",1), upto(("O",3))))
    dm = issue(min(n, OPT['maxissue']))
    rd = []
    for it in cons:
        if it == cons[0] or s < 4: rd.append(wait(*(cons if s >= 4 else [it])))
        if it[0] == "W": rd += rdW(it, WREG(it[1]))
        elif it[0] == "X": rd += rdX(it, 64*(it[1]&1)+16*it[2])
    plans = [sp(dm, 0, 8, 16), sp(rd, 8 if len(rd) < 16 else 6, 14, 16)]
    if s == 0:
        p0 = [[] for _ in range(16)]
        for q, bt in enumerate(BT[1:]): p0[4*q] = [wait(("X",0,bt))] + rdX(("X",0,bt),16*bt); p0[4*q+3] = ["s_waitcnt lgkmcnt(0)"]
        plans = [sp(dm, 0, 4, 16), p0, sp(rd, 12, 15, 16)]; cons += stream[:5]
    block(mf, *plans)
SOWN = qacc[2, 0][1]
sacc = {1: ("a",64), 2: ("a",80), 3: ("a",96), 0: ("v",SOWN)}
ex = {}
def wrpart(bt, src):
    def first():
        ex[bt] = g.free.pop(0)
    return [first] + [lazy(lambda q=q: f"ds_write_b128 v28, {A(src+4*q)} offset:{ex[bt]*4096+q*1024}") for q in range(4)]
g.run(wait(("K",0),("K",1))); e("s_barrier")
cv = []
for n in range(8):
    e("s_waitcnt lgkmcnt(0)"); stamp(); rel(*cons); cons = []
    bt = BT[n & 3]; plans = []
    if n < 4: mf = [mfma(R(qacc[bt,t],16), A(WREG(s)+4*t), A(64+16*bt+4*(s&3)), False) for s in (14,15) for t in range(4)]
    else: mf = [mfma(R(sacc[bt],16), A(KREG[bt]+8*t+4*m), V(qb[bt,t]+4*m), t == 0 and m == 0) for t in range(4) for m in range(2)]
    if 1 <= n <= 4: cv += cvts(BT[n-1])
    q = {1: 24, 2: 28, 3: 28, 4: 28, 5: 28, 6: 24}.get(n, 0)
    if q: plans.append(sp(cv[:q], 2 if n == 1 else 0, 8, 8)); cv = cv[q:]
    if n in (0, 1): plans.append(sp(rdK(BT[n]), 0, 6, 8))
    if n in (5, 6): plans.append(sp(rdK(BT[n-3]), 0, 6, 8))
    if n > 4: plans.append(sp(wrpart(BT[n-5], sacc[BT[n-5]][1]), 3, 7, 8))
    if n == 4: cons = [("O",0),("O",1)]; plans.append(sp([wait(*cons)] + rdO(cons[0],128) + rdO(cons[1],144), 1, 7, 8))
    if n in (6, 7):
        cons = VI[2*(n-6):2*(n-6)+2]
        plans.append(sp([wait(*cons)] + rdX(cons[0], VREG+32*(n-6)) + rdX(cons[1], VREG+32*(n-6)+16), 2, 7, 8))
    ni = {0: 1, 1: 1, 2: 2, 3: 2, 4: 2}.get(n, 0)
    dm = issue(min(ni, upto(VI[3]))) if n < 7 else issue(1, reserve=1)
    plans.append(sp(dm, 0, 8, 8))
    block(mf, *plans)
assert not cv
e("s_waitcnt lgkmcnt(0)")
e("s_barrier"); rel(("K",0),("K",1))
T0 = 208
sm1 = []
for bt in (1,2,3):
    sm1.append(f"v_add_u32 v{bt}, s{40+bt}, v28")
    sm1 += [f"ds_read_b128 {V(T0+16*(bt-1)+4*q)}, v{bt} offset:{ex[bt]*4096+q*1024}" for q in range(4)]
S = SOWN
sm = ["s_waitcnt lgkmcnt(0)"]
for j in range(16): sm.append(f"v_add_f32 v{T0+j}, v{T0+j}, v{T0+16+j}")
for j in range(16): sm.append(f"v_add_f32 v{S+j}, v{S+j}, v{T0+32+j}")
for j in range(16): sm.append(f"v_add_f32 v{S+j}, v{S+j}, v{T0+j}")
sm += [f"v_max3_f32 v1, v{S}, v{S+1}, v{S+2}", f"v_max3_f32 v2, v{S+3}, v{S+4}, v{S+5}"]
for j in range(6,16,4):
    sm.append(f"v_max3_f32 v1, v1, v{S+j}, v{S+j+1}")
    if j+2 < 16: sm.append(f"v_max3_f32 v2, v2, v{S+j+2}, v{S+j+3}")
sm += ["v_max_f32 v1, v1, v2", "v_mov_b32 v2, v1", "v_permlane32_swap_b32 v1, v2", "v_max_f32 v1, v1, v2", "v_mul_f32 v1, s48, v1"]
for j in range(16): sm.append(f"v_fma_f32 v{S+j}, v{S+j}, s48, -v1")
for j in range(16): sm.append(f"v_exp_f32 v{S+j}, v{S+j}")
sm += [f"v_add_f32 v1, v{S}, v{S+1}", f"v_add_f32 v2, v{S+2}, v{S+3}"]
for j in range(4,16,2): sm += [f"v_add_f32 v1, v1, v{S+j}", f"v_add_f32 v2, v2, v{S+j+1}"]
sm += ["v_add_f32 v1, v1, v2", "v_mov_b32 v2, v1", "v_permlane32_swap_b32 v1, v2", "v_add_f32 v1, v1, v2", "v_rcp_f32 v1, v1",
       "v_lshlrev_b32 v3, 4, v0"]
for j in range(16): sm.append(f"v_mul_f32 v{S+j}, v{S+j}, v1")
for j in range(8): sm.append(f"v_cvt_pk_bf16_f32 v{S+j}, v{S+2*j}, v{S+2*j+1}")
def pst(m):
    def f():
        e(f"buffer_store_dwordx4 {V(S+4*m)}, v3, s[28:31], s46 offen offset:{m*1024} sc1"); g.last["PST"] = g.vm
    return f
sm += [pst(0), pst(1)]

ub = {0:(96,128), 1:(160,32), 2:(192,224), 3:(96,128), 4:(160,32), 5:(192,224), 6:(64,128), 7:(224,32)}
ustore = {0:("a",64), 1:("a",96), 2:("a",0)}
def utile(h, tt): return ub[h][tt>>1] + 16*(tt&1)
def ucvt(h):
    r = []; d = ub[h][0]
    for tt in range(4):
        b = utile(h, tt)
        for j in range(8):
            r.append(f"v_cvt_pk_bf16_f32 v{d+8*tt+j}, v{b+2*j}, v{b+2*j+1}")
            if h in ustore: r.append(f"v_accvgpr_write_b32 a{ustore[h][1]+8*tt+j}, v{d+8*tt+j}")
    if h not in ustore: ustore[h] = ("v", d)
    return r
NSM = 3
smparts = [sm[i*len(sm)//NSM:(i+1)*len(sm)//NSM] for i in range(NSM)]
pend_cvt = []
for s in range(16):
    h, half = s // 2, s % 2
    e("s_waitcnt lgkmcnt(0)"); stamp(); rel(*cons)
    if s == NSM + OPT.get('sig',1):
        g.run(wait("PST")); e("s_barrier")
        for bt in (1,2,3): g.free.append(ex[bt])
        for l in ["s_cmp_lg_u32 s68, 0", "s_cbranch_scc1 L_nosig", "s_mov_b64 exec, 1", "v_mov_b32 v1, s83"]: e(l)
        g.raw("    buffer_store_dword v1, off, s[28:31], s44 sc1"); e("s_mov_b64 exec, -1"); g.raw("L_nosig:"); e("s_nop 3")
        pass
    if s == OPT['pollstep']:
        e("v_and_b32 v3, 7, v0"); e("v_lshlrev_b32 v3, 2, v3"); e("buffer_load_dword v2, v3, s[28:31], s45 offen sc1"); g.last["POLL"] = g.vm
    if s == OPT['pollstep'] + 2:
        g.run(wait("POLL"))
        for l in ["v_cmp_ne_u32 vcc, s83, v2", "s_nop 1", "s_cmp_eq_u64 vcc, 0", "s_cbranch_scc1 L_ready", "s_mov_b32 s82, 0"]: e(l)
        g.raw("L_spin:")
        for l in ["s_sleep 8", "buffer_load_dword v2, v3, s[28:31], s45 offen sc1", "s_add_u32 s82, s82, 1", "s_waitcnt vmcnt(0)",
                  "v_cmp_ne_u32 vcc, s83, v2", "s_nop 1", "s_cmp_eq_u64 vcc, 0", "s_cbranch_scc1 L_ready",
                  "s_cmp_lt_u32 s82, 0x4000", "s_cbranch_scc1 L_spin"]: g.raw("    " + l)
        g.raw("L_ready:"); gate["P"] = True
        for l in ["s_lshl_b32 s81, s69, 11", "v_add_u32 v18, s81, v28", "v_xor_b32 v19, 0x800, v18"]: e(l)
        pass
    wb = 128 + 32 * (s & 1)
    mf = [mfma(V(utile(h,2*b+nt),16), A(VREG+32*b+16*half+4*k), A(wb+8*k+4*nt), half == 0 and k == 0)
          for k in range(4) for b in range(2) for nt in range(2)]
    dm = issue(3 if s < OPT.get('u3',2) else 2)
    wn = 128 + 32 * ((s + 1) & 1)
    if s < 15:
        cons = [("O",2*s+2),("O",2*s+3)]; rd = [wait(*cons)] + rdO(cons[0], wn) + rdO(cons[1], wn+16)
    else:
        cons = [("P",0),("P",1)]; rd = [wait(*cons)] + rdP(cons[0], wn) + rdP(cons[1], wn+16)
    plans = [spread(dm, 0, 8, 16) if dm else [[]]*16, spread(rd, 7, 14, 16)]
    if half == 0 and h > 0: pend_cvt += ucvt(h-1)
    if pend_cvt and s >= NSM:
        n = 44 if s < 6 else (len(pend_cvt) // 2 if half == 0 else len(pend_cvt))
        plans.append(spread(pend_cvt[:n], 3 if half == 0 and s >= 6 else 0, 16, 16)); pend_cvt = pend_cvt[n:]
        if s == 5: assert not pend_cvt
    if s == 0: plans = [spread(sm1, 0, 3, 16)] + plans + [spread(smparts[0], 5, 16, 16)]
    elif s < NSM: plans.append(spread(smparts[s], 0, 16, 16))
    block(mf, *plans)
pass
OOWN = 128
oacc = {0: ("v",OOWN), 1: ("a",192), 2: ("a",208), 3: ("a",224)}
PB = [128, 160, 128, 32]
def omf(h, tt, m):
    u = ustore[h]
    return mfma(R(oacc[tt],16), R((u[0],u[1]+8*tt+4*m),4), A(PB[h//2]+16*(h&1)+8*(tt>>1)+4*m), h == 0 and m == 0)
for s in range(2):
    e("s_waitcnt lgkmcnt(0)"); stamp(); rel(*cons)
    plans = []
    if s == 0: plans.append(spread(ucvt(7), 3, 16, 16))
    mf = [omf(2*s+hh, tt, m) for hh in range(2) for m in range(2) for tt in range(4)]
    plans.append(sp(issue(99), 0, 8, 16))
    cons = [("P",i) for i in (range(2,4) if s == 0 else range(4,8))]
    rd = [wait(*cons)]
    for it in cons: rd += rdP(it, PB[it[1]//2]+16*(it[1]&1))
    plans.append(spread(rd, 6, 14, 16))
    block(mf, *plans)
e("s_waitcnt lgkmcnt(0)"); stamp(); rel(*cons)
T0 = 32
mf = [omf(h, tt, m) for tt in (1,2,3,0) for h in range(4,8) for m in range(2)]
adr = ["v_and_b32 v4, 31, v0", "v_lshrrev_b32 v5, 5, v0", "v_lshlrev_b32 v4, 12, v4", "v_lshl_add_u32 v4, v5, 5, v4"]
adr += [f"v_add_u32 v{tt}, s{40+tt}, v28" for tt in (1,2,3)]
plans = [spread(adr, 0, 7, 32), spread(wrpart(1, oacc[1][1]), 19, 22, 32), spread(wrpart(2, oacc[2][1]), 22, 25, 32)]
TB = {1: 32, 2: 48, 3: 144}
fin = ["s_nop 7"] + wrpart(3, oacc[3][1])
p = [[] for _ in range(32)]; p[25] = fin; p[27] = ["s_waitcnt lgkmcnt(0)", "s_barrier"] + \
    [lazy(lambda tt=tt, q=q: f"ds_read_b128 {V(TB[tt]+4*q)}, v{tt} offset:{ex[tt]*4096+q*1024}") for tt in (1,2,3) for q in range(4)]
plans.append(p)
block(mf, *plans)
e("s_waitcnt lgkmcnt(0)"); stamp()
S = OOWN
for j in range(0,16,2): e(f"v_pk_add_f32 {V(32+j,2)}, {V(32+j,2)}, {V(48+j,2)}")
for j in range(0,16,2): e(f"v_pk_add_f32 {V(32+j,2)}, {V(32+j,2)}, {V(144+j,2)}")
for j in range(0,16,2): e(f"v_pk_add_f32 {V(S+j,2)}, {V(S+j,2)}, {V(32+j,2)}")
for j in range(8): e(f"v_cvt_pk_bf16_f32 v{S+j}, v{S+2*j}, v{S+2*j+1}")
for m in range(2): e(f"buffer_store_dwordx4 {V(S+4*m)}, v4, s[32:35], s47 offen offset:{16*m}")
if OPT['stamp']:
    e("s_waitcnt vmcnt(0) lgkmcnt(0)"); stamp(); e("s_memrealtime s[38:39]"); e("s_waitcnt lgkmcnt(0)"); stamp()
    for l in ["v_writelane_b32 v31, s86, 1", "v_writelane_b32 v31, s88, 2", "v_writelane_b32 v31, s36, 0", "v_writelane_b32 v31, s38, 63",
              f"s_mov_b32 s81, {nst[0]-1}", "v_writelane_b32 v31, s81, 62",
              "s_lshl_b32 s82, s2, 2", "s_add_u32 s82, s82, s68", "s_lshl_b32 s82, s82, 8", "s_add_u32 s82, s82, 0x200000",
              "v_lshlrev_b32 v1, 2, v0", "buffer_store_dword v31, v1, s[28:31], s82 offen"]: e(l)
assert nxt[0] == len(stream)

hdr = open(f"cdna_kernels/{NAME}.s.ref").read().split("; Override launch")[0]
txt = hdr + f"""; @launch grid=(256,1,1) block=(256,1,1) lds=163840
.amdgcn_target "amdgcn-amd-amdhsa--gfx950"
.text
.globl {NAME}_kernel
.p2align 8
.type {NAME}_kernel,@function
{NAME}_kernel:
""" + "\n".join(g.out) + f"""
L_end:
    s_endpgm
.section .rodata,"a"
.p2align 6
.amdhsa_kernel {NAME}_kernel
  .amdhsa_next_free_vgpr 512
  .amdhsa_next_free_sgpr 102
  .amdhsa_accum_offset 256
  .amdhsa_group_segment_fixed_size 0
  .amdhsa_kernarg_size 104
  .amdhsa_user_sgpr_count 2
  .amdhsa_user_sgpr_kernarg_segment_ptr 1
  .amdhsa_system_sgpr_workgroup_id_x 1
.end_amdhsa_kernel
"""
open(sys.argv[1], "w").write(txt)
```

```python
import re, sys
NAME = "concat_heads__gqa_block_cached__gqa_block_cached__near_ridge"
OPT = dict(stamp=0, nslots=10, pollstep=9, maxissue=3)
for a in sys.argv[2:]:
    k, v = a.split("="); OPT[k] = int(v)
AREA = 40960

def regs(tok):
    tok = tok.strip()
    m = re.fullmatch(r"-?([va])\[(\d+):(\d+)\]", tok)
    if m: return [m.group(1) + str(i) for i in range(int(m.group(2)), int(m.group(3)) + 1)]
    m = re.fullmatch(r"-?([va])(\d+)", tok)
    if m: return [m.group(1) + m.group(2)]
    return []

class Gen:
    def __init__(s):
        s.out = []; s.ws = 0
        s.mf_w = {}; s.va_w = {}; s.mf_c = {}; s.tr_w = {}; s.st_r = {}
        s.vm = 0
        s.free = list(range(OPT['nslots'])); s.slot = {}; s.last = {}
        s.pend_lds = set()
    def raw(s, t): s.out.append(t)
    def e(s, t):
        op = t.split()[0]
        if OPT.get('nomfma') and op.startswith("v_mfma"): return
        if OPT.get('nods') and op.startswith("ds_read"): return
        if OPT.get('nodma') and " lds" in t and s.vm > 40: s.vm += 1; return
        ops = [x.strip() for x in t[len(op):].split(",")]
        ops = [o.split()[0] if o else o for o in ops]
        need = 0
        def chk(tab, rs, n):
            nonlocal need
            for r in rs:
                if r in tab: need = max(need, n - (s.ws - tab[r]))
        if op.startswith("v_mfma"):
            d, a, b, c = regs(ops[0]), regs(ops[1]), regs(ops[2]), regs(ops[3])
            chk(s.va_w, a + b + c, 2); chk(s.mf_w, a + b, 12)
            if c != d: chk(s.mf_w, c + d, 12)
            rd, wr = a + b + c, d
        elif op.startswith("v_"):
            wr = regs(ops[0]); rd = sum((regs(o) for o in ops[1:]), [])
            if op.startswith("v_fmac") or op.startswith("v_permlane"): rd += wr
            if op.startswith("v_permlane"): wr = wr + regs(ops[1]); chk(s.va_w, rd, 2)
            if op.startswith("v_readfirstlane"): chk(s.va_w, rd, 1)
            chk(s.mf_w, rd + wr, 12); chk(s.mf_c, wr, 7); chk(s.st_r, wr, 2)
            if not re.match(r"v_(exp|rcp|log)", op): chk(s.tr_w, rd, 1)
        elif op.startswith("ds_read") or (op.startswith("buffer_load") and " lds" not in t):
            wr = regs(ops[0]); rd = regs(ops[1]); chk(s.mf_w, rd + wr, 12); chk(s.st_r, wr, 1)
        elif op.startswith("ds_write") or op.startswith("buffer_"):
            wr = []; rd = sum((regs(o) for o in ops[:2]), []); chk(s.mf_w, rd, 12)
        else: rd, wr = [], []
        for r in rd + wr:
            assert r not in s.pend_lds or op.startswith("ds_read") and r not in rd and False, ("unwaited lds reg", t)
        if need > 0:
            s.out.append(f"    s_nop {need-1}"); s.ws += need
            if OPT.get('verbose'): print("nop", need, "before", t, file=sys.stderr)
        s.out.append("    " + t); s.ws += 1
        if op == "s_nop": s.ws += int(ops[0])
        if op.startswith("v_mfma"):
            for r in wr: s.mf_w[r] = s.ws
            for r in regs(ops[3]): s.mf_c[r] = s.ws
        elif op.startswith("v_"):
            for r in wr:
                s.va_w[r] = s.ws; s.mf_w.pop(r, None)
                if re.match(r"v_(exp|rcp|log)", op): s.tr_w[r] = s.ws
                else: s.tr_w.pop(r, None)
        if op.startswith("ds_read"): s.pend_lds |= set(wr)
        if op.startswith("s_waitcnt") and "lgkmcnt(0)" in t: s.pend_lds = set()
        if op.startswith("buffer_store"):
            for r in regs(ops[0]): s.st_r[r] = s.ws
        if op.startswith("buffer_"): s.vm += 1
    def run(s, f):
        if callable(f): f()
        else: s.e(f)
g = Gen(); e = g.e

EARLY = {0: [], 1: [3], 2: [2, 3], 3: [1, 2, 3], 4: [3, 3]}[OPT.get("early", 0)]
S0 = [("X",0,1),("W",0),("LX",1),("X",0,2),("X",0,3),("X",0,0)]
stream = list(S0)
CONS = {}
for st in range(14):
    CONS[st] = [("W",st+1)] + ([("X", st//4+1, st%4)] if st < 12 else [])
CONS[13].append(("W",15))
for j in range(4):
    cl = [("W",4*j+4)] if j < 3 else []
    sc = ([("LX",j+2)] if j < 2 else []) + ([("T",),("TV",)] if j == OPT.get("tat",2) else [])
    stream += cl + sc + [("O",i) for i, x in enumerate(EARLY) if x == j]
    CONS[4*j] = sc + CONS[4*j]
    if j < 3: stream += [("W",4*j+1),("X",j+1,0),("W",4*j+2),("X",j+1,1),("W",4*j+3),("X",j+1,2),("X",j+1,3)]
    else: stream += [("W",13),("K",0),("K",1),("W",14),("W",15)]
EB = OPT.get("eb", 0); B0 = OPT.get("b0", 5)
VI = [("V",b,h) for b in range(2) for h in range(2)]
stream += [("O",i) for i in range(len(EARLY), 4)] + VI + [("O",i) for i in range(4,32)] + [("P",i) for i in range(8)]
bpos = []; NB = OPT.get("nb", 8)
nxt = [0]; gate = {"P": False}
SOFF = "s80"
STX, STW, HD = 49, 53, 90
ORD = {0:[[0,1,2,3]]*4, 1:[[0,1,2,3],[1,2,3,0],[2,3,0,1],[3,0,1,2]], 2:[[0,1,2,3],[0,2,3,1],[1,0,3,2],[1,3,2,0]], 3:[[0,1,2,3],[0,1,2,3],[1,0,3,2],[1,0,3,2]]}[OPT.get("ord",0)]
def item_ops(it):
    k = it[0]
    def head():
        if it not in g.slot: g.slot[it] = g.free.pop(0)
        sl = g.slot[it]
        e(f"s_add_u32 m0, s70, {sl*4096}")
        if k == "X": e(f"s_add_u32 {SOFF}, s{72+it[2]}, {it[1]*128}")
        elif k == "W": e(f"s_add_u32 {SOFF}, s{[71,50,51,52][it[1]%4]}, {it[1]//4*524288}")
        elif k == "K": e(f"s_add_u32 {SOFF}, s76, {it[1]*128}")
        elif k == "T": e("s_and_b32 s81, s6, 7"); e("s_lshl_b32 s81, s81, 10"); e(f"s_add_u32 {SOFF}, s76, s81"); e("v_lshlrev_b32 v29, 4, v0")
        elif k == "TX":
            for l in ["s_lshl_b32 s81, s5, 2", "s_add_u32 s81, s81, s68", "s_lshl_b32 s81, s81, 13", f"s_add_u32 {SOFF}, s81, {it[1]*4096}", "v_lshlrev_b32 v18, 4, v0"]: e(l)
        elif k == "LX":
            for l in ["s_and_b32 s81, s6, 7", "s_lshl_b32 s81, s81, 15", f"s_add_u32 {SOFF}, s81, {it[1]*128}"]: e(l)
        elif k == "TV":
            for l in ["s_and_b32 s81, s62, 1", "s_lshl_b32 s81, s81, 7", "s_bitcmp1_b32 s62, 1", "s_cselect_b32 s82, s78, s77", f"s_add_u32 {SOFF}, s82, s81"]: e(l)
        elif k == "V": e(f"s_add_u32 {SOFF}, s{77+it[1]}, {it[2]*128}")
        elif k == "O": e(f"s_add_u32 {SOFF}, s{HD+it[1]//4}, {it[1]%4*32*2048}")
        elif k == "P": e(f"s_lshr_b32 {SOFF}, s{HD+it[1]}, 6")
    vb, srd = dict(X=(1,8), W=(5,12), K=(9,16), V=(9,20), O=(13,24), P=(17,28), T=(29,16), TV=(9,20), TX=(18,8), LX=(1,8))[k]
    def dma(i):
        def f():
            if i == 0: head()
            v = vb if k in ("P","TX") else vb + i
            fl = " sc1" if k == "P" else (" nt" if (k == "W" and OPT.get("ntw",0)) or (k == "X" and OPT.get("ntx",0)) else "")
            lead = (k == "W" and it[1] % 4 == 0) or (k == "O" and it[1] < OPT.get("do",4)) or (k == "X" and it[1] < OPT.get("dx",0)) or (k == "LX" and OPT.get("dt",0))
            if lead and OPT.get("dbl",1): e(f"buffer_load_dwordx4 v{v}, s[{srd}:{srd+3}], {SOFF} offen offset:{i*1024} nt lds")
            e(f"buffer_load_dwordx4 v{v}, s[{srd}:{srd+3}], {SOFF} offen offset:{i*1024}{fl} lds")
            if k == "W" and i == 3 and OPT.get("qp",0):
                e("s_add_u32 m0, m0, s40"); e("s_nop 0"); e(f"buffer_load_dwordx4 v17, s[{srd}:{srd+3}], {SOFF} offen lds")
            g.last[it] = g.vm
        return f
    return [dma(i) for i in range({"T": 1, "LX": 2}.get(k, 4))]
def issue(n, reserve=0):
    r = []; avail = len(g.free) - reserve
    while n > 0 and avail > 0 and nxt[0] < len(stream):
        it = stream[nxt[0]]
        if it[0] == "P" and not gate["P"]: break
        r += item_ops(it); nxt[0] += 1; n -= 1; avail -= 1
    return r
def wait(*its):
    def f():
        l = max(g.last[it] for it in its); n = g.vm - l
        cl = [c for c, p in enumerate(bpos) if p >= l and not (its[0][0] == "O" and its[0][1] < EB)]
        if cl and n < 63:
            lab = f"L_w{len(g.out)}"
            e(f"s_sub_u32 s81, s71, {cl[0]}"); e(f"s_cmp_le_u32 s81, {cl[-1]-cl[0]}"); e(f"s_waitcnt vmcnt({min(n+8*EB,63)})")
            e(f"s_cbranch_scc1 {lab}"); e(f"s_waitcnt vmcnt({n})"); g.raw(lab + ":")
        else: e(f"s_waitcnt vmcnt({min(n,63)})")
    return f
def rel(*its):
    for it in its: g.free.append(g.slot.pop(it))
def A(b, n=4): return f"a[{b}:{b+n-1}]"
def V(b, n=4): return f"v[{b}:{b+n-1}]"
def lazy(fn): return lambda: e(fn())
def rdX(it, dst, addr=18):
    return [lazy(lambda ks=ks: f"ds_read_b128 {A(dst+4*ks)}, v{addr+ks} offset:{g.slot[it]*4096}") for ks in range(4)]
def rdW(it, dst):
    return [lazy(lambda t=t, rd=rd: f"ds_read_b64_tr_b16 {A(dst+4*t+2*rd,2)}, v{22+t} offset:{g.slot[it]*4096+rd*1024}")
            for t in range(4) for rd in range(2)]
def rdO(it, dst):
    return [lazy(lambda k=k, nt=nt, rd=rd: f"ds_read_b64_tr_b16 {A(dst+8*k+4*nt+2*rd,2)}, v{26+nt} offset:{g.slot[it]*4096+k*2048+rd*512}")
            for k in range(2) for nt in range(2) for rd in range(2)]
def rdP(it, dst):
    return [lazy(lambda b=b, m=m: f"ds_read_b128 {A(dst+8*b+4*m)}, v{18+b} offset:{g.slot[it]*4096+m*1024}")
            for b in range(2) for m in range(2)]
def spread(lst, lo, hi, n):
    r = [[] for _ in range(n)]
    for i, f in enumerate(lst): r[lo + i * (hi - lo) // len(lst)].append(f)
    return r
def block(mf, *plans):
    for i, m in enumerate(mf):
        e(m)
        for p in plans:
            for f in p[i]: g.run(f)
def mfma(d, a, b, first): return f"v_mfma_f32_32x32x16_bf16 {d}, {a}, {b}, {'0' if first else d}"
nst = [0]
def stamp(fine=False):
    if OPT['stamp']:
        if nst[0] >= 3: e(f"v_writelane_b32 v31, s84, {nst[0]}")
        nst[0] += 1
        r = {1: 86, 2: 88}.get(nst[0], 84)
        e(f"s_memtime s[{r}:{r+1}]")
P = """
s_cmp_ge_u32 s2, 256
s_cbranch_scc1 L_end
s_load_dwordx16 s[36:51], s[0:1], 0
s_load_dwordx8 s[52:59], s[0:1], 64
s_load_dwordx2 s[60:61], s[0:1], 96
s_memrealtime s[98:99]
v_lshrrev_b32 v29, 6, v0
v_and_b32 v0, 63, v0
v_readfirstlane_b32 s68, v29
s_and_b32 s3, s2, 3
s_bfe_u32 s4, s2, 0x10002
s_lshr_b32 s5, s2, 3
s_and_b32 s6, s5, 7
s_lshl_b32 s7, s3, 3
s_add_u32 s6, s6, s7
s_lshr_b32 s7, s5, 3
s_mul_i32 s70, s68, 40960
SAME
v_lshrrev_b32 v29, 3, v0
v_and_b32 v30, 7, v0
v_lshrrev_b32 v31, 4, v0
v_xor_b32 v9, v30, v31
v_xor_b32 v10, 4, v9
v_lshlrev_b32 v9, 4, v9
v_lshlrev_b32 v10, 4, v10
s_lshl_b32 s81, s7, 18
s_lshl_b32 s82, s68, 9
s_add_u32 s81, s81, s82
v_lshl_add_u32 v1, v29, 11, s81
v_add_u32 v2, v1, v10
v_add_u32 v1, v1, v9
v_add_u32 v2, 15360, v2
v_add_u32 v3, 30720, v1
v_add_u32 v4, 30720, v2
v_and_b32 v5, 15, v0
v_lshlrev_b32 v6, 2, v31
v_xor_b32 v5, v5, v6
v_lshlrev_b32 v5, 4, v5
v_lshl_add_u32 v5, v31, 13, v5
s_lshl_b32 s81, s68, 21
s_lshl_b32 s82, s6, 8
s_add_u32 s81, s81, s82
v_add_u32 v5, s81, v5
v_add_u32 v6, 31744, v5
v_add_u32 v7, 63488, v5
v_add_u32 v8, 95232, v5
s_lshl_b32 s71, s7, 17
s_lshl_b32 s72, s68, 16
s_xor_b32 s73, s72, 0x10000
s_xor_b32 s74, s72, 0x20000
s_xor_b32 s75, s72, 0x30000
s_mov_b32 s10, 0x100000
s_mov_b32 s11, 0x20000
s_mov_b32 s14, 0x800000
s_mov_b32 s15, 0x20000
s_cmp_eq_u32 s4, 0
s_waitcnt lgkmcnt(0)
s_cselect_b32 s8, s36, s46
s_cselect_b32 s9, s37, s47
s_cselect_b32 s12, s42, s52
s_cselect_b32 s13, s43, s53
"""
SEL = """
s_cselect_b32 s16, s38, s48
s_cselect_b32 s17, s39, s49
s_cselect_b32 s20, s40, s50
s_cselect_b32 s21, s41, s51
s_cselect_b32 s24, s44, s54
s_cselect_b32 s25, s45, s55
"""
stamp()
P = P.replace("SAME\n", {0:"", 1:"s_mov_b32 s6, 0\ns_mov_b32 s62, 0\n", 2:"s_and_b32 s6, s6, 1\ns_and_b32 s62, s62, 1\n"}[OPT.get('same',0)])
for l in P.strip().split("\n"): e(l)
if OPT['stamp']: e("s_memrealtime s[100:101]")
stamp()
for f in issue(3): g.run(f)
e("s_cmp_eq_u32 s4, 0")
for l in SEL.strip().split("\n"): e(l)
for l in ["s_mov_b32 s28, s60", "s_mov_b32 s29, s61", "s_mov_b32 s32, s56", "s_mov_b32 s33, s57", "s_mov_b32 s64, s58", "s_mov_b32 s65, s59"]: e(l)
for l in ["s_mov_b32 s66, 256", "s_mov_b32 s67, 0x20000", "s_or_b32 s81, s2, s68", "s_cbranch_scc1 L_nonon", "s_or_b32 s98, s98, 1", "v_mov_b32 v18, s98",
          "v_lshlrev_b32 v19, 6, v0", "s_mov_b64 exec, 15"]: e(l)
g.raw("    buffer_store_dword v18, v19, s[64:67], 0 offen sc1"); e("s_mov_b64 exec, -1"); g.raw("L_nonon:")
P2 = """
s_and_b32 s62, s5, 3
s_lshl_b32 s63, s3, 2
s_add_u32 s62, s62, s63
s_lshr_b32 s63, s5, 2
s_mov_b32 s18, 0x80000
s_mov_b32 s19, 0x20000
s_mov_b32 s22, 0x80000
s_mov_b32 s23, 0x20000
s_mov_b32 s26, 0x800000
s_mov_b32 s27, 0x20000
s_mov_b32 s30, 0x242000
s_mov_b32 s31, 0x20000
s_mov_b32 s34, 0x200000
s_mov_b32 s35, 0x20000
v_and_b32 v13, 1, v31
v_lshlrev_b32 v13, 2, v13
v_xor_b32 v13, v13, v30
v_lshlrev_b32 v13, 4, v13
v_lshl_add_u32 v13, v29, 11, v13
s_lshl_b32 s81, s68, 21
s_lshl_b32 s82, s62, 7
s_add_u32 s81, s81, s82
v_add_u32 v13, s81, v13
v_add_u32 v14, 15360, v13
v_add_u32 v15, 30720, v13
v_add_u32 v16, 46080, v13
v_lshl_add_u32 v9, v29, 8, v9
v_lshl_add_u32 v10, v29, 8, v10
v_add_u32 v10, 1024, v10
v_add_u32 v11, 2048, v9
v_add_u32 v12, 2048, v10
s_lshl_b32 s76, s7, 2
s_add_u32 s76, s76, s68
s_lshl_b32 s76, s76, 15
s_lshl_b32 s81, s3, 13
s_add_u32 s76, s76, s81
s_lshr_b32 s69, s68, 1
s_lshl_b32 s77, s63, 1
s_add_u32 s77, s77, s69
s_lshl_b32 s77, s77, 15
s_lshl_b32 s81, s68, 13
s_add_u32 s77, s77, s81
s_xor_b32 s78, s77, 0x8000
s_lshl_b32 s81, s4, 3
s_add_u32 s81, s81, s63
s_lshl_b32 s81, s81, 17
s_lshl_b32 s82, s68, 15
s_add_u32 s81, s81, s82
s_mov_b32 s57, s81
v_lshl_add_u32 v28, v0, 4, s70
v_and_b32 v29, 31, v0
v_lshrrev_b32 v30, 5, v0
v_bfe_u32 v31, v0, 1, 3
v_xor_b32 v31, v31, v30
v_lshl_add_u32 v29, v29, 7, s70
v_lshl_add_u32 v18, v31, 4, v29
v_xor_b32 v19, 2, v31
v_lshl_add_u32 v19, v19, 4, v29
v_xor_b32 v20, 4, v31
v_lshl_add_u32 v20, v20, 4, v29
v_xor_b32 v21, 6, v31
v_lshl_add_u32 v21, v21, 4, v29
v_bfe_u32 v29, v0, 2, 2
v_lshl_add_u32 v30, v30, 3, v29
v_bfe_u32 v31, v0, 1, 1
v_lshlrev_b32 v31, 3, v31
v_add_u32 v31, s70, v31
v_lshl_add_u32 v26, v30, 7, v31
v_lshl_add_u32 v31, v30, 8, v31
v_and_b32 v30, 16, v0
v_add_u32 v26, v26, v30
v_lshl_add_u32 v31, v30, 1, v31
v_and_b32 v30, 1, v0
v_lshl_add_u32 v26, v30, 5, v26
v_lshl_add_u32 v31, v30, 4, v31
v_lshl_add_u32 v22, v29, 6, v31
v_xor_b32 v23, 1, v29
v_lshl_add_u32 v23, v23, 6, v31
v_xor_b32 v24, 2, v29
v_lshl_add_u32 v24, v24, 6, v31
v_xor_b32 v25, 3, v29
v_lshl_add_u32 v25, v25, 6, v31
v_lshrrev_b32 v29, 1, v29
s_and_b32 s81, s68, 1
v_xor_b32 v29, s81, v29
v_xor_b32 v30, 1, v29
v_lshl_add_u32 v27, v30, 6, v26
v_lshl_add_u32 v26, v29, 6, v26
s_xor_b32 s81, s68, 1
s_mul_i32 s41, s81, 40960
s_sub_u32 s41, s41, s70
s_xor_b32 s81, s68, 2
s_mul_i32 s42, s81, 40960
s_sub_u32 s42, s42, s70
s_xor_b32 s81, s68, 3
s_mul_i32 s43, s81, 40960
s_sub_u32 s43, s43, s70
s_lshl_b32 s81, s4, 2
s_add_u32 s82, s81, s7
s_lshl_b32 s82, s82, 2
s_add_u32 s82, s82, s3
s_lshl_b32 s82, s82, 6
s_and_b32 s44, s6, 7
s_add_u32 s44, s82, s44
s_lshl_b32 s44, s44, 2
s_add_u32 s44, s44, 0x240000
s_lshr_b32 s82, s63, 1
s_add_u32 s82, s82, s81
s_lshl_b32 s82, s82, 2
s_add_u32 s82, s82, s68
s_lshl_b32 s45, s82, 8
s_add_u32 s45, s45, 0x240000
s_lshl_b32 s79, s68, 6
s_lshl_b32 s81, s4, 3
s_lshl_b32 s82, s7, 1
s_add_u32 s81, s81, s82
s_add_u32 s81, s81, s69
s_lshl_b32 s81, s81, 5
s_add_u32 s81, s81, s6
s_lshl_b32 s81, s81, 12
s_and_b32 s82, s68, 1
s_lshl_b32 s82, s82, 11
s_add_u32 s46, s81, s82
s_lshl_b32 s81, s63, 1
s_add_u32 s81, s81, s69
s_lshl_b32 s81, s81, 17
s_lshl_b32 s82, s4, 11
s_add_u32 s81, s81, s82
s_lshl_b32 s82, s62, 7
s_add_u32 s81, s81, s82
s_and_b32 s82, s68, 1
s_lshl_b32 s82, s82, 6
s_add_u32 s47, s81, s82
s_mov_b32 s48, 0x3e0293ee
"""
for l in P2.strip().split("\n"): e(l)
for r in (1,2,3): e(f"s_xor_b32 s{49+r}, s71, {r<<17}")
e("s_lshl_b32 s40, s7, 5")
for r in range(4): e(f"v_xor_b32 v{18+r}, s40, v{18+r}")
e("s_lshl_b32 s82, s62, 1"); e("s_add_u32 s82, s82, s63")
for i in range(8):
    if OPT.get("rot",1): e(f"s_add_u32 s81, s82, {i}"); e("s_and_b32 s81, s81, 7"); e(f"s_lshl_b32 s{HD+i}, s81, 18")
    else: e(f"s_mov_b32 s{HD+i}, {i<<18}")
for f in issue(0): g.run(f)

BT = [1, 2, 3, 0]
qacc = {}
i = 0
for bt in BT:
    for t in range(4):
        if bt == 1 and t < 2: qacc[bt, t] = ("a", 160 + 16 * t)
        else: qacc[bt, t] = ("v", 32 + 16 * i); i += 1
def R(x, n): return f"{x[0]}[{x[1]}:{x[1]+n-1}]"
KREG = {1: 0, 2: 32, 3: 0, 0: 32}
VREG = 192
def rdK(bt):
    kr = []
    for j in range(4):
        ad = 18 + j
        if bt: kr.append(f"v_add_u32 v{29+(j&1)}, s{40+bt}, v{18+j}"); ad = 29 + (j & 1)
        for h in range(2):
            kr.append(lazy(lambda j=j, h=h, ad=ad, bt=bt: f"ds_read_b128 {A(KREG[bt]+16*h+4*j)}, v{ad} offset:{g.slot['K',h]*4096}"))
    return kr
cons = []
qb = {}
def cvts(bt):
    r = []
    order = [2, 3, 0, 1] if bt == 1 else range(4)
    for t in order:
        k, b = qacc[bt, t]
        if k == "v":
            qb[bt, t] = b
            r += [f"v_cvt_pk_bf16_f32 v{b+j}, v{b+2*j}, v{b+2*j+1}" for j in range(8)]
        else:
            d = qacc[bt, t + 2][1] + 8; qb[bt, t] = d
            for j in range(8):
                tm = 1 + 2 * (j % 4)
                r += [f"v_accvgpr_read_b32 v{tm}, a{b+2*j}", f"v_accvgpr_read_b32 v{tm+1}, a{b+2*j+1}",
                      f"v_cvt_pk_bf16_f32 v{d+j}, v{tm}, v{tm+1}"]
    return r
E16 = [[]]*16
def sp(l, lo, hi, n): return spread(l, lo, hi, n) if l else [[]]*n
def upto(it, extra=0):
    return max(0, stream.index(it) + 1 + extra - nxt[0])
WREG = lambda i: {15: 192}.get(i, 128 + 16*(i & 1))
LA = OPT.get("la", 4)
hx, hw = [], []
for it in S0:
    for f in issue(upto(it, OPT.get("la0", 3))): g.run(f)
    g.run(wait(it))
    if it[0] == "W":
        for f in rdW(it, WREG(it[1])): g.run(f)
        hw.append(it[1]); new = [(bt, it[1]) for bt in hx]
    elif it[0] == "X":
        for f in rdX(it, 16*it[2]): g.run(f)
        hx.append(it[2]); new = [(it[2], w) for w in hw]
    else: new = []
    if it == S0[-1]: cons = [it]; break
    e("s_waitcnt lgkmcnt(0)"); stamp(); rel(it)
    for bt, w in new:
        for t_ in range(4): e(mfma(R(qacc[bt,t_],16), A(WREG(w)+4*t_), A(16*bt+4*w), w == 0))
for s in range(14):
    st, ks = s // 4, s % 4
    e("s_waitcnt lgkmcnt(0)"); stamp(); rel(*cons)
    mf = [mfma(R(qacc[bt,t],16), A(WREG(s)+4*t), A(64*(st&1)+16*bt+4*ks), s == 0) for bt in BT for t in range(4)]
    if s == 0: mf = ["s_nop 0"] * 12 + mf[12:]
    if s == 12:
        for r in range(4): e(f"v_xor_b32 v{18+r}, s40, v{18+r}")
    if s == 8: e("buffer_load_dword v30, off, s[64:67], s79 sc1"); g.last["NON"] = g.vm
    if s == 12:
        g.run(wait("NON"))
        for l in ["v_readfirstlane_b32 s83, v30", "s_cmp_lg_u32 s83, 0", "s_cbranch_scc1 L_gotn", "s_mov_b32 s82, 0"]: e(l)
        g.raw("L_spinn:")
        for l in ["s_sleep 8", "buffer_load_dword v30, off, s[64:67], s79 sc1", "s_add_u32 s82, s82, 1", "s_waitcnt vmcnt(0)",
                  "v_readfirstlane_b32 s83, v30", "s_cmp_lg_u32 s83, 0", "s_cbranch_scc1 L_gotn",
                  "s_cmp_lt_u32 s82, 0x4000", "s_cbranch_scc1 L_spinn"]: g.raw("    " + l)
        g.raw("L_gotn:")
    if EB and B0 <= s < B0 + NB:
        e(f"s_cmp_lg_u32 s71, {s-B0}"); e(f"s_cbranch_scc1 L_nb{s}")
        v0 = g.vm
        for i in range(EB):
            for f in item_ops(("O",i)): g.run(f)
            g.last["O",i] = v0
        g.vm = v0; bpos.append(v0); g.raw(f"L_nb{s}:")
    cons = list(CONS[s])
    n = min(max(upto(c, LA) for c in cons), upto(("W",15)))
    if n == 0 or nxt[0] + n > stream.index(("W",15)): n = max(n, min(OPT.get("opace",2), upto(VI[3])))
    dm = issue(max(min(n, OPT['maxissue']), max(upto(c) for c in cons)))
    rd = []
    for it in cons:
        if it == cons[0]: rd.append(wait(*cons))
        if it[0] == "W": rd += rdW(it, WREG(it[1]))
        elif it[0] == "X": rd += rdX(it, 64*(it[1]&1)+16*it[2])
    plans = [sp(dm, 0, 8, 16), sp(rd, 8 if len(rd) < 16 else 6, 14, 16)]
    block(mf, *plans)
SOWN = qacc[2, 0][1]
sacc = {1: ("a",64), 2: ("a",80), 3: ("a",96), 0: ("v",SOWN)}
ex = {}
def wrpart(bt, src):
    def first():
        ex[bt] = g.free.pop(0)
    return [first] + [lazy(lambda q=q: f"ds_write_b128 v28, {A(src+4*q)} offset:{ex[bt]*4096+q*1024}") for q in range(4)]
g.run(wait(("K",0),("K",1))); e("s_barrier")
cv = []
for n in range(8):
    e("s_waitcnt lgkmcnt(0)"); stamp(); rel(*cons); cons = []
    bt = BT[n & 3]; plans = []
    if n < 4: mf = [mfma(R(qacc[bt,t],16), A(WREG(s)+4*t), A(64+16*bt+4*(s&3)), False) for s in (14,15) for t in range(4)]
    else: mf = [mfma(R(sacc[bt],16), A(KREG[bt]+8*t+4*m), V(qb[bt,t]+4*m), t == 0 and m == 0) for t in range(4) for m in range(2)]
    if 1 <= n <= 4: cv += cvts(BT[n-1])
    q = {1: 24, 2: 28, 3: 28, 4: 28, 5: 28, 6: 24}.get(n, 0)
    if q: plans.append(sp(cv[:q], 2 if n == 1 else 0, 8, 8)); cv = cv[q:]
    if n in (0, 1): plans.append(sp(rdK(BT[n]), 0, 6, 8))
    if n in (5, 6): plans.append(sp(rdK(BT[n-3]), 0, 6, 8))
    if n > 4: plans.append(sp(wrpart(BT[n-5], sacc[BT[n-5]][1]), 3, 7, 8))
    if n == 4: cons = [("O",0),("O",1)]; plans.append(sp([wait(*cons)] + rdO(cons[0],128) + rdO(cons[1],144), 1, 7, 8))
    if n in (6, 7):
        cons = VI[2*(n-6):2*(n-6)+2]
        plans.append(sp([wait(*cons)] + rdX(cons[0], VREG+32*(n-6)) + rdX(cons[1], VREG+32*(n-6)+16), 2, 7, 8))
    ni = {0: 1, 1: 1, 2: 2, 3: 2, 4: 2}.get(n, 0)
    dm = issue(min(ni, upto(VI[3]))) if n < 7 else issue(1, reserve=1)
    plans.append(sp(dm, 0, 8, 8))
    block(mf, *plans)
assert not cv
e("s_waitcnt lgkmcnt(0)")
e("s_barrier"); rel(("K",0),("K",1))
T0 = 208
sm1 = []
for bt in (1,2,3):
    sm1.append(f"v_add_u32 v{bt}, s{40+bt}, v28")
    sm1 += [f"ds_read_b128 {V(T0+16*(bt-1)+4*q)}, v{bt} offset:{ex[bt]*4096+q*1024}" for q in range(4)]
S = SOWN
sm = ["s_waitcnt lgkmcnt(0)"]
for j in range(16): sm.append(f"v_add_f32 v{T0+j}, v{T0+j}, v{T0+16+j}")
for j in range(16): sm.append(f"v_add_f32 v{S+j}, v{S+j}, v{T0+32+j}")
for j in range(16): sm.append(f"v_add_f32 v{S+j}, v{S+j}, v{T0+j}")
sm += [f"v_max3_f32 v1, v{S}, v{S+1}, v{S+2}", f"v_max3_f32 v2, v{S+3}, v{S+4}, v{S+5}"]
for j in range(6,16,4):
    sm.append(f"v_max3_f32 v1, v1, v{S+j}, v{S+j+1}")
    if j+2 < 16: sm.append(f"v_max3_f32 v2, v2, v{S+j+2}, v{S+j+3}")
sm += ["v_max_f32 v1, v1, v2", "v_mov_b32 v2, v1", "v_permlane32_swap_b32 v1, v2", "v_max_f32 v1, v1, v2", "v_mul_f32 v1, s48, v1"]
for j in range(16): sm.append(f"v_fma_f32 v{S+j}, v{S+j}, s48, -v1")
for j in range(16): sm.append(f"v_exp_f32 v{S+j}, v{S+j}")
sm += [f"v_add_f32 v1, v{S}, v{S+1}", f"v_add_f32 v2, v{S+2}, v{S+3}"]
for j in range(4,16,2): sm += [f"v_add_f32 v1, v1, v{S+j}", f"v_add_f32 v2, v2, v{S+j+1}"]
sm += ["v_add_f32 v1, v1, v2", "v_mov_b32 v2, v1", "v_permlane32_swap_b32 v1, v2", "v_add_f32 v1, v1, v2", "v_rcp_f32 v1, v1",
       "v_lshlrev_b32 v3, 4, v0"]
for j in range(16): sm.append(f"v_mul_f32 v{S+j}, v{S+j}, v1")
for j in range(8): sm.append(f"v_cvt_pk_bf16_f32 v{S+j}, v{S+2*j}, v{S+2*j+1}")
def pst(m):
    def f():
        e(f"buffer_store_dwordx4 {V(S+4*m)}, v3, s[28:31], s46 offen offset:{m*1024} sc1"); g.last["PST"] = g.vm
    return f
sm += [pst(0), pst(1)]

ub = {0:(96,128), 1:(160,32), 2:(192,224), 3:(96,128), 4:(160,32), 5:(192,224), 6:(64,128), 7:(224,32)}
ustore = {0:("a",64), 1:("a",96), 2:("a",0)}
def utile(h, tt): return ub[h][tt>>1] + 16*(tt&1)
def ucvt(h):
    r = []; d = ub[h][0]
    for tt in range(4):
        b = utile(h, tt)
        for j in range(8):
            r.append(f"v_cvt_pk_bf16_f32 v{d+8*tt+j}, v{b+2*j}, v{b+2*j+1}")
            if h in ustore: r.append(f"v_accvgpr_write_b32 a{ustore[h][1]+8*tt+j}, v{d+8*tt+j}")
    if h not in ustore: ustore[h] = ("v", d)
    return r
NSM = 3
smparts = [sm[i*len(sm)//NSM:(i+1)*len(sm)//NSM] for i in range(NSM)]
pend_cvt = []
for s in range(16):
    h, half = s // 2, s % 2
    e("s_waitcnt lgkmcnt(0)"); stamp(); rel(*cons)
    if s == NSM + OPT.get('sig',1):
        g.run(wait("PST")); e("s_barrier")
        for bt in (1,2,3): g.free.append(ex[bt])
        for l in ["s_cmp_lg_u32 s68, 0", "s_cbranch_scc1 L_nosig", "s_mov_b64 exec, 1", "v_mov_b32 v1, s83"]: e(l)
        g.raw("    buffer_store_dword v1, off, s[28:31], s44 sc1"); e("s_mov_b64 exec, -1"); g.raw("L_nosig:"); e("s_nop 3")
        pass
    if s == OPT['pollstep']:
        e("v_and_b32 v3, 7, v0"); e("v_lshlrev_b32 v3, 2, v3"); e("buffer_load_dword v2, v3, s[28:31], s45 offen sc1"); g.last["POLL"] = g.vm
    if s == OPT['pollstep'] + 2:
        g.run(wait("POLL"))
        for l in ["v_cmp_ne_u32 vcc, s83, v2", "s_nop 1", "s_cmp_eq_u64 vcc, 0", "s_cbranch_scc1 L_ready", "s_mov_b32 s82, 0"]: e(l)
        g.raw("L_spin:")
        for l in ["s_sleep 8", "buffer_load_dword v2, v3, s[28:31], s45 offen sc1", "s_add_u32 s82, s82, 1", "s_waitcnt vmcnt(0)",
                  "v_cmp_ne_u32 vcc, s83, v2", "s_nop 1", "s_cmp_eq_u64 vcc, 0", "s_cbranch_scc1 L_ready",
                  "s_cmp_lt_u32 s82, 0x4000", "s_cbranch_scc1 L_spin"]: g.raw("    " + l)
        g.raw("L_ready:"); gate["P"] = True
        for l in ["s_lshl_b32 s81, s69, 11", "v_add_u32 v18, s81, v28", "v_xor_b32 v19, 0x800, v18", "v_lshl_add_u32 v17, v0, 4, s57"]: e(l)
        pass
    wb = 128 + 32 * (s & 1)
    mf = [mfma(V(utile(h,2*b+nt),16), A(VREG+32*b+16*half+4*k), A(wb+8*k+4*nt), half == 0 and k == 0)
          for k in range(4) for b in range(2) for nt in range(2)]
    dm = issue(3 if s < OPT.get('u3',2) else 2)
    wn = 128 + 32 * ((s + 1) & 1)
    if s < 15:
        cons = [("O",2*s+2),("O",2*s+3)]; rd = [wait(*cons)] + rdO(cons[0], wn) + rdO(cons[1], wn+16)
    else:
        cons = [("P",0),("P",1)]; rd = [wait(*cons)] + rdP(cons[0], wn) + rdP(cons[1], wn+16)
    plans = [spread(dm, 0, 8, 16) if dm else [[]]*16, spread(rd, 7, 14, 16)]
    if half == 0 and h > 0: pend_cvt += ucvt(h-1)
    if pend_cvt and s >= NSM:
        n = 44 if s < 6 else (len(pend_cvt) // 2 if half == 0 else len(pend_cvt))
        plans.append(spread(pend_cvt[:n], 3 if half == 0 and s >= 6 else 0, 16, 16)); pend_cvt = pend_cvt[n:]
        if s == 5: assert not pend_cvt
    if s == 0: plans = [spread(sm1, 0, 3, 16)] + plans + [spread(smparts[0], 5, 16, 16)]
    elif s < NSM: plans.append(spread(smparts[s], 0, 16, 16))
    block(mf, *plans)
pass
OOWN = 128
oacc = {0: ("v",OOWN), 1: ("a",192), 2: ("a",208), 3: ("a",224)}
PB = [128, 160, 128, 32]
def omf(h, tt, m):
    u = ustore[h]
    return mfma(R(oacc[tt],16), R((u[0],u[1]+8*tt+4*m),4), A(PB[h//2]+16*(h&1)+8*(tt>>1)+4*m), h == 0 and m == 0)
for s in range(2):
    e("s_waitcnt lgkmcnt(0)"); stamp(); rel(*cons)
    plans = []
    if s == 0: plans.append(spread(ucvt(7), 3, 16, 16))
    mf = [omf(2*s+hh, tt, m) for hh in range(2) for m in range(2) for tt in range(4)]
    plans.append(sp(issue(99), 0, 8, 16))
    cons = [("P",i) for i in (range(2,4) if s == 0 else range(4,8))]
    rd = [wait(*cons)]
    for it in cons: rd += rdP(it, PB[it[1]//2]+16*(it[1]&1))
    plans.append(spread(rd, 6, 14, 16))
    block(mf, *plans)
e("s_waitcnt lgkmcnt(0)"); stamp(); rel(*cons)
T0 = 32
mf = [omf(h, tt, m) for tt in (1,2,3,0) for h in range(4,8) for m in range(2)]
adr = ["v_and_b32 v4, 31, v0", "v_lshrrev_b32 v5, 5, v0", "v_lshlrev_b32 v4, 12, v4", "v_lshl_add_u32 v4, v5, 5, v4"]
adr += [f"v_add_u32 v{tt}, s{40+tt}, v28" for tt in (1,2,3)]
plans = [spread(adr, 0, 7, 32), spread(wrpart(1, oacc[1][1]), 19, 22, 32), spread(wrpart(2, oacc[2][1]), 22, 25, 32)]
TB = {1: 32, 2: 48, 3: 144}
fin = ["s_nop 7"] + wrpart(3, oacc[3][1])
p = [[] for _ in range(32)]; p[25] = fin; p[27] = ["s_waitcnt lgkmcnt(0)", "s_barrier"] + \
    [lazy(lambda tt=tt, q=q: f"ds_read_b128 {V(TB[tt]+4*q)}, v{tt} offset:{ex[tt]*4096+q*1024}") for tt in (1,2,3) for q in range(4)]
plans.append(p)
block(mf, *plans)
e("s_waitcnt lgkmcnt(0)"); stamp()
S = OOWN
for j in range(0,16,2): e(f"v_pk_add_f32 {V(32+j,2)}, {V(32+j,2)}, {V(48+j,2)}")
for j in range(0,16,2): e(f"v_pk_add_f32 {V(32+j,2)}, {V(32+j,2)}, {V(144+j,2)}")
for j in range(0,16,2): e(f"v_pk_add_f32 {V(S+j,2)}, {V(S+j,2)}, {V(32+j,2)}")
for j in range(8): e(f"v_cvt_pk_bf16_f32 v{S+j}, v{S+2*j}, v{S+2*j+1}")
for m in range(2): e(f"buffer_store_dwordx4 {V(S+4*m)}, v4, s[32:35], s47 offen offset:{16*m}" + {0:"",1:" sc1",2:" nt",3:" sc0 sc1"}[OPT.get("of",0)])
if OPT['stamp']:
    e("s_waitcnt vmcnt(0) lgkmcnt(0)"); stamp(); e("s_memrealtime s[38:39]"); e("s_waitcnt lgkmcnt(0)"); stamp()
    for l in ["v_writelane_b32 v31, s86, 1", "v_writelane_b32 v31, s88, 2", "v_writelane_b32 v31, s100, 0", "v_writelane_b32 v31, s38, 63",
              f"s_mov_b32 s81, {nst[0]-1}", "v_writelane_b32 v31, s81, 62",
              "s_lshl_b32 s82, s2, 2", "s_add_u32 s82, s82, s68", "s_lshl_b32 s82, s82, 8", "s_add_u32 s82, s82, 0x200000",
              "v_lshlrev_b32 v1, 2, v0", "buffer_store_dword v31, v1, s[28:31], s82 offen"]: e(l)
assert nxt[0] == len(stream)

hdr = open(f"cdna_kernels/{NAME}.s.ref").read().split("; Override launch")[0]
txt = hdr + f"""; @launch grid=(256,1,1) block=(256,1,1) lds=163840
.amdgcn_target "amdgcn-amd-amdhsa--gfx950"
.text
.globl {NAME}_kernel
.p2align 8
.type {NAME}_kernel,@function
{NAME}_kernel:
""" + "\n".join(g.out) + f"""
L_end:
    s_endpgm
.section .rodata,"a"
.p2align 6
.amdhsa_kernel {NAME}_kernel
  .amdhsa_next_free_vgpr 512
  .amdhsa_next_free_sgpr 102
  .amdhsa_accum_offset 256
  .amdhsa_group_segment_fixed_size 0
  .amdhsa_kernarg_size 104
  .amdhsa_user_sgpr_count 2
  .amdhsa_user_sgpr_kernarg_segment_ptr 1
  .amdhsa_system_sgpr_workgroup_id_x 1
.end_amdhsa_kernel
"""
open(sys.argv[1], "w").write(txt)
```

```python
import re, sys
NAME = "concat_heads__gqa_block_cached__gqa_block_cached__near_ridge"
OPT = dict(warm=1, dbl=0, tat=9, early=2, stamp=0, nslots=10, pollstep=9, maxissue=3)
for a in sys.argv[2:]:
    k, v = a.split("="); OPT[k] = int(v)
AREA = 40960

def regs(tok):
    tok = tok.strip()
    m = re.fullmatch(r"-?([va])\[(\d+):(\d+)\]", tok)
    if m: return [m.group(1) + str(i) for i in range(int(m.group(2)), int(m.group(3)) + 1)]
    m = re.fullmatch(r"-?([va])(\d+)", tok)
    if m: return [m.group(1) + m.group(2)]
    return []

class Gen:
    def __init__(s):
        s.out = []; s.ws = 0
        s.mf_w = {}; s.va_w = {}; s.mf_c = {}; s.tr_w = {}; s.st_r = {}
        s.vm = 0
        s.free = list(range(OPT['nslots'])); s.slot = {}; s.last = {}
        s.pend_lds = set()
    def raw(s, t): s.out.append(t)
    def e(s, t):
        op = t.split()[0]
        if OPT.get('nomfma') and op.startswith("v_mfma"): return
        if OPT.get('nods') and op.startswith("ds_read"): return
        if OPT.get('nodma') and " lds" in t and s.vm > 40: s.vm += 1; return
        ops = [x.strip() for x in t[len(op):].split(",")]
        ops = [o.split()[0] if o else o for o in ops]
        need = 0
        def chk(tab, rs, n):
            nonlocal need
            for r in rs:
                if r in tab: need = max(need, n - (s.ws - tab[r]))
        if op.startswith("v_mfma"):
            d, a, b, c = regs(ops[0]), regs(ops[1]), regs(ops[2]), regs(ops[3])
            chk(s.va_w, a + b + c, 2); chk(s.mf_w, a + b, 12)
            if c != d: chk(s.mf_w, c + d, 12)
            rd, wr = a + b + c, d
        elif op.startswith("v_"):
            wr = regs(ops[0]); rd = sum((regs(o) for o in ops[1:]), [])
            if op.startswith("v_fmac") or op.startswith("v_permlane"): rd += wr
            if op.startswith("v_permlane"): wr = wr + regs(ops[1]); chk(s.va_w, rd, 2)
            if op.startswith("v_readfirstlane"): chk(s.va_w, rd, 1)
            chk(s.mf_w, rd + wr, 12); chk(s.mf_c, wr, 7); chk(s.st_r, wr, 2)
            if not re.match(r"v_(exp|rcp|log)", op): chk(s.tr_w, rd, 1)
        elif op.startswith("ds_read") or (op.startswith("buffer_load") and " lds" not in t):
            wr = regs(ops[0]); rd = regs(ops[1]); chk(s.mf_w, rd + wr, 12); chk(s.st_r, wr, 1)
        elif op.startswith("ds_write") or op.startswith("buffer_"):
            wr = []; rd = sum((regs(o) for o in ops[:2]), []); chk(s.mf_w, rd, 12)
        else: rd, wr = [], []
        for r in rd + wr:
            assert r not in s.pend_lds or op.startswith("ds_read") and r not in rd and False, ("unwaited lds reg", t)
        if need > 0:
            s.out.append(f"    s_nop {need-1}"); s.ws += need
            if OPT.get('verbose'): print("nop", need, "before", t, file=sys.stderr)
        s.out.append("    " + t); s.ws += 1
        if op == "s_nop": s.ws += int(ops[0])
        if op.startswith("v_mfma"):
            for r in wr: s.mf_w[r] = s.ws
            for r in regs(ops[3]): s.mf_c[r] = s.ws
        elif op.startswith("v_"):
            for r in wr:
                s.va_w[r] = s.ws; s.mf_w.pop(r, None)
                if re.match(r"v_(exp|rcp|log)", op): s.tr_w[r] = s.ws
                else: s.tr_w.pop(r, None)
        if op.startswith("ds_read"): s.pend_lds |= set(wr)
        if op.startswith("s_waitcnt") and "lgkmcnt(0)" in t: s.pend_lds = set()
        if op.startswith("buffer_store"):
            for r in regs(ops[0]): s.st_r[r] = s.ws
        if op.startswith("buffer_"): s.vm += 1
    def run(s, f):
        if callable(f): f()
        else: s.e(f)
g = Gen(); e = g.e

EARLY = {0: [], 1: [3], 2: [2, 3], 3: [1, 2, 3], 4: [3, 3]}[OPT.get("early", 0)]
S0 = [("X",0,1),("W",0),("LX",1),("X",0,2),("X",0,3),("X",0,0)]
stream = list(S0)
CONS = {}
for st in range(14):
    CONS[st] = [("W",st+1)] + ([("X", st//4+1, st%4)] if st < 12 else [])
CONS[13].append(("W",15))
for j in range(4):
    cl = [("W",4*j+4)] if j < 3 else []
    sc = ([("LX",j+2)] if j < 2 else []) + ([("T",),("TV",)] if j == OPT.get("tat",2) else [])
    stream += cl + sc + [("O",i) for i, x in enumerate(EARLY) if x == j]
    CONS[4*j] = sc + CONS[4*j]
    if j < 3: stream += [("W",4*j+1),("X",j+1,0),("W",4*j+2),("X",j+1,1),("W",4*j+3),("X",j+1,2),("X",j+1,3)]
    else: stream += [("W",13),("K",0),("K",1),("W",14),("W",15)]
EB = OPT.get("eb", 0); B0 = OPT.get("b0", 5)
VI = [("V",b,h) for b in range(2) for h in range(2)]
stream += [("O",i) for i in range(len(EARLY), 4)] + VI + [("O",i) for i in range(4,32)] + [("P",i) for i in range(8)]
bpos = []; NB = OPT.get("nb", 8)
nxt = [0]; gate = {"P": False}
SOFF = "s80"
STX, STW, HD = 49, 53, 90
ORD = {0:[[0,1,2,3]]*4, 1:[[0,1,2,3],[1,2,3,0],[2,3,0,1],[3,0,1,2]], 2:[[0,1,2,3],[0,2,3,1],[1,0,3,2],[1,3,2,0]], 3:[[0,1,2,3],[0,1,2,3],[1,0,3,2],[1,0,3,2]]}[OPT.get("ord",0)]
def item_ops(it):
    k = it[0]
    def head():
        if it not in g.slot: g.slot[it] = g.free.pop(0)
        sl = g.slot[it]
        e(f"s_add_u32 m0, s70, {sl*4096}")
        if k == "X": e(f"s_add_u32 {SOFF}, s{72+it[2]}, {it[1]*128}")
        elif k == "W": e(f"s_add_u32 {SOFF}, s{[71,50,51,52][it[1]%4]}, {it[1]//4*524288}")
        elif k == "K": e(f"s_add_u32 {SOFF}, s76, {it[1]*128}")
        elif k == "T": e("s_and_b32 s81, s6, 7"); e("s_lshl_b32 s81, s81, 10"); e(f"s_add_u32 {SOFF}, s76, s81"); e("v_lshlrev_b32 v29, 4, v0")
        elif k == "TX":
            for l in ["s_lshl_b32 s81, s5, 2", "s_add_u32 s81, s81, s68", "s_lshl_b32 s81, s81, 13", f"s_add_u32 {SOFF}, s81, {it[1]*4096}", "v_lshlrev_b32 v18, 4, v0"]: e(l)
        elif k == "LX":
            for l in ["s_and_b32 s81, s6, 7", "s_lshl_b32 s81, s81, 15", f"s_add_u32 {SOFF}, s81, {it[1]*128}"]: e(l)
        elif k == "TV":
            for l in ["s_and_b32 s81, s62, 1", "s_lshl_b32 s81, s81, 7", "s_bitcmp1_b32 s62, 1", "s_cselect_b32 s82, s78, s77", f"s_add_u32 {SOFF}, s82, s81"]: e(l)
        elif k == "V": e(f"s_add_u32 {SOFF}, s{77+it[1]}, {it[2]*128}")
        elif k == "O": e(f"s_add_u32 {SOFF}, s{HD+it[1]//4}, {it[1]%4*32*2048}")
        elif k == "P": e(f"s_lshr_b32 {SOFF}, s{HD+it[1]}, 6")
    vb, srd = dict(X=(1,8), W=(5,12), K=(9,16), V=(9,20), O=(13,24), P=(17,28), T=(29,16), TV=(9,20), TX=(18,8), LX=(1,8))[k]
    def dma(i):
        def f():
            if i == 0: head()
            v = vb if k in ("P","TX") else vb + i
            fl = " sc1" if k == "P" else (" nt" if (k == "W" and OPT.get("ntw",0)) or (k == "X" and OPT.get("ntx",0)) else "")
            lead = (k == "W" and it[1] % 4 == 0) or (k == "O" and it[1] < OPT.get("do",4)) or (k == "X" and it[1] < OPT.get("dx",0)) or (k == "LX" and OPT.get("dt",0))
            if lead and OPT.get("dbl",1): e(f"buffer_load_dwordx4 v{v}, s[{srd}:{srd+3}], {SOFF} offen offset:{i*1024} nt lds")
            e(f"buffer_load_dwordx4 v{v}, s[{srd}:{srd+3}], {SOFF} offen offset:{i*1024}{fl} lds")
            if k == "W" and i == 3 and OPT.get("qp",0):
                e("s_add_u32 m0, m0, s40"); e("s_nop 0"); e(f"buffer_load_dwordx4 v17, s[{srd}:{srd+3}], {SOFF} offen lds")
            g.last[it] = g.vm
        return f
    return [dma(i) for i in range({"T": 1, "LX": 2}.get(k, 4))]
def issue(n, reserve=0):
    r = []; avail = len(g.free) - reserve
    while n > 0 and avail > 0 and nxt[0] < len(stream):
        it = stream[nxt[0]]
        if it[0] == "P" and not gate["P"]: break
        r += item_ops(it); nxt[0] += 1; n -= 1; avail -= 1
    return r
def wait(*its):
    def f():
        l = max(g.last[it] for it in its); n = g.vm - l
        cl = [c for c, p in enumerate(bpos) if p >= l and not (its[0][0] == "O" and its[0][1] < EB)]
        if cl and n < 63:
            lab = f"L_w{len(g.out)}"
            e(f"s_sub_u32 s81, s71, {cl[0]}"); e(f"s_cmp_le_u32 s81, {cl[-1]-cl[0]}"); e(f"s_waitcnt vmcnt({min(n+8*EB,63)})")
            e(f"s_cbranch_scc1 {lab}"); e(f"s_waitcnt vmcnt({n})"); g.raw(lab + ":")
        else: e(f"s_waitcnt vmcnt({min(n,63)})")
    return f
def rel(*its):
    for it in its: g.free.append(g.slot.pop(it))
def A(b, n=4): return f"a[{b}:{b+n-1}]"
def V(b, n=4): return f"v[{b}:{b+n-1}]"
def lazy(fn): return lambda: e(fn())
def rdX(it, dst, addr=18):
    return [lazy(lambda ks=ks: f"ds_read_b128 {A(dst+4*ks)}, v{addr+ks} offset:{g.slot[it]*4096}") for ks in range(4)]
def rdW(it, dst):
    return [lazy(lambda t=t, rd=rd: f"ds_read_b64_tr_b16 {A(dst+4*t+2*rd,2)}, v{22+t} offset:{g.slot[it]*4096+rd*1024}")
            for t in range(4) for rd in range(2)]
def rdO(it, dst):
    return [lazy(lambda k=k, nt=nt, rd=rd: f"ds_read_b64_tr_b16 {A(dst+8*k+4*nt+2*rd,2)}, v{26+nt} offset:{g.slot[it]*4096+k*2048+rd*512}")
            for k in range(2) for nt in range(2) for rd in range(2)]
def rdP(it, dst):
    return [lazy(lambda b=b, m=m: f"ds_read_b128 {A(dst+8*b+4*m)}, v{18+b} offset:{g.slot[it]*4096+m*1024}")
            for b in range(2) for m in range(2)]
def spread(lst, lo, hi, n):
    r = [[] for _ in range(n)]
    for i, f in enumerate(lst): r[lo + i * (hi - lo) // len(lst)].append(f)
    return r
def block(mf, *plans):
    for i, m in enumerate(mf):
        e(m)
        for p in plans:
            for f in p[i]: g.run(f)
def mfma(d, a, b, first): return f"v_mfma_f32_32x32x16_bf16 {d}, {a}, {b}, {'0' if first else d}"
nst = [0]
def stamp(fine=False):
    if OPT['stamp']:
        if nst[0] >= 3: e(f"v_writelane_b32 v31, s84, {nst[0]}")
        nst[0] += 1
        r = {1: 86, 2: 88}.get(nst[0], 84)
        e(f"s_memtime s[{r}:{r+1}]")
P = """
s_cmp_ge_u32 s2, 256
s_cbranch_scc1 L_end
s_load_dwordx16 s[36:51], s[0:1], 0
s_load_dwordx8 s[52:59], s[0:1], 64
s_load_dwordx2 s[60:61], s[0:1], 96
s_memrealtime s[98:99]
v_lshrrev_b32 v29, 6, v0
v_and_b32 v0, 63, v0
v_readfirstlane_b32 s68, v29
s_and_b32 s3, s2, 3
s_bfe_u32 s4, s2, 0x10002
s_lshr_b32 s5, s2, 3
s_and_b32 s6, s5, 7
s_lshl_b32 s7, s3, 3
s_add_u32 s6, s6, s7
s_lshr_b32 s7, s5, 3
s_mul_i32 s70, s68, 40960
SAME
v_lshrrev_b32 v29, 3, v0
v_and_b32 v30, 7, v0
v_lshrrev_b32 v31, 4, v0
v_xor_b32 v9, v30, v31
v_xor_b32 v10, 4, v9
v_lshlrev_b32 v9, 4, v9
v_lshlrev_b32 v10, 4, v10
s_lshl_b32 s81, s7, 18
s_lshl_b32 s82, s68, 9
s_add_u32 s81, s81, s82
v_lshl_add_u32 v1, v29, 11, s81
v_add_u32 v2, v1, v10
v_add_u32 v1, v1, v9
v_add_u32 v2, 15360, v2
v_add_u32 v3, 30720, v1
v_add_u32 v4, 30720, v2
v_and_b32 v5, 15, v0
v_lshlrev_b32 v6, 2, v31
v_xor_b32 v5, v5, v6
v_lshlrev_b32 v5, 4, v5
v_lshl_add_u32 v5, v31, 13, v5
s_lshl_b32 s81, s68, 21
s_lshl_b32 s82, s6, 8
s_add_u32 s81, s81, s82
v_add_u32 v5, s81, v5
v_add_u32 v6, 31744, v5
v_add_u32 v7, 63488, v5
v_add_u32 v8, 95232, v5
s_lshl_b32 s71, s7, 17
s_lshl_b32 s72, s68, 16
s_xor_b32 s73, s72, 0x10000
s_xor_b32 s74, s72, 0x20000
s_xor_b32 s75, s72, 0x30000
s_mov_b32 s10, 0x100000
s_mov_b32 s11, 0x20000
s_mov_b32 s14, 0x800000
s_mov_b32 s15, 0x20000
s_cmp_eq_u32 s4, 0
s_waitcnt lgkmcnt(0)
s_cselect_b32 s8, s36, s46
s_cselect_b32 s9, s37, s47
s_cselect_b32 s12, s42, s52
s_cselect_b32 s13, s43, s53
"""
SEL = """
s_cselect_b32 s16, s38, s48
s_cselect_b32 s17, s39, s49
s_cselect_b32 s20, s40, s50
s_cselect_b32 s21, s41, s51
s_cselect_b32 s24, s44, s54
s_cselect_b32 s25, s45, s55
"""
stamp()
P = P.replace("SAME\n", {0:"", 1:"s_mov_b32 s6, 0\ns_mov_b32 s62, 0\n", 2:"s_and_b32 s6, s6, 1\ns_and_b32 s62, s62, 1\n"}[OPT.get('same',0)])
for l in P.strip().split("\n"): e(l)
if OPT['stamp']: e("s_memrealtime s[100:101]")
stamp()
for f in issue(3): g.run(f)
e("s_cmp_eq_u32 s4, 0")
for l in SEL.strip().split("\n"): e(l)
for l in ["s_mov_b32 s28, s60", "s_mov_b32 s29, s61", "s_mov_b32 s32, s56", "s_mov_b32 s33, s57", "s_mov_b32 s64, s58", "s_mov_b32 s65, s59"]: e(l)
for l in ["s_mov_b32 s66, 256", "s_mov_b32 s67, 0x20000", "s_or_b32 s81, s2, s68", "s_cbranch_scc1 L_nonon", "s_or_b32 s98, s98, 1", "v_mov_b32 v18, s98",
          "v_lshlrev_b32 v19, 6, v0", "s_mov_b64 exec, 15"]: e(l)
g.raw("    buffer_store_dword v18, v19, s[64:67], 0 offen sc1"); e("s_mov_b64 exec, -1"); g.raw("L_nonon:")
P2 = """
s_and_b32 s62, s5, 3
s_lshl_b32 s63, s3, 2
s_add_u32 s62, s62, s63
s_lshr_b32 s63, s5, 2
s_mov_b32 s18, 0x80000
s_mov_b32 s19, 0x20000
s_mov_b32 s22, 0x80000
s_mov_b32 s23, 0x20000
s_mov_b32 s26, 0x800000
s_mov_b32 s27, 0x20000
s_mov_b32 s30, 0x243000
s_mov_b32 s31, 0x20000
s_mov_b32 s34, 0x200000
s_mov_b32 s35, 0x20000
v_and_b32 v13, 1, v31
v_lshlrev_b32 v13, 2, v13
v_xor_b32 v13, v13, v30
v_lshlrev_b32 v13, 4, v13
v_lshl_add_u32 v13, v29, 11, v13
s_lshl_b32 s81, s68, 21
s_lshl_b32 s82, s62, 7
s_add_u32 s81, s81, s82
v_add_u32 v13, s81, v13
v_add_u32 v14, 15360, v13
v_add_u32 v15, 30720, v13
v_add_u32 v16, 46080, v13
v_lshl_add_u32 v9, v29, 8, v9
v_lshl_add_u32 v10, v29, 8, v10
v_add_u32 v10, 1024, v10
v_add_u32 v11, 2048, v9
v_add_u32 v12, 2048, v10
s_lshl_b32 s76, s7, 2
s_add_u32 s76, s76, s68
s_lshl_b32 s76, s76, 15
s_lshl_b32 s81, s3, 13
s_add_u32 s76, s76, s81
s_lshr_b32 s69, s68, 1
s_lshl_b32 s77, s63, 1
s_add_u32 s77, s77, s69
s_lshl_b32 s77, s77, 15
s_lshl_b32 s81, s68, 13
s_add_u32 s77, s77, s81
s_xor_b32 s78, s77, 0x8000
s_lshl_b32 s81, s4, 3
s_add_u32 s81, s81, s63
s_lshl_b32 s81, s81, 17
s_lshl_b32 s82, s68, 15
s_add_u32 s81, s81, s82
s_add_u32 s57, s81, 0x1000
v_lshl_add_u32 v28, v0, 4, s70
v_and_b32 v29, 31, v0
v_lshrrev_b32 v30, 5, v0
v_bfe_u32 v31, v0, 1, 3
v_xor_b32 v31, v31, v30
v_lshl_add_u32 v29, v29, 7, s70
v_lshl_add_u32 v18, v31, 4, v29
v_xor_b32 v19, 2, v31
v_lshl_add_u32 v19, v19, 4, v29
v_xor_b32 v20, 4, v31
v_lshl_add_u32 v20, v20, 4, v29
v_xor_b32 v21, 6, v31
v_lshl_add_u32 v21, v21, 4, v29
v_bfe_u32 v29, v0, 2, 2
v_lshl_add_u32 v30, v30, 3, v29
v_bfe_u32 v31, v0, 1, 1
v_lshlrev_b32 v31, 3, v31
v_add_u32 v31, s70, v31
v_lshl_add_u32 v26, v30, 7, v31
v_lshl_add_u32 v31, v30, 8, v31
v_and_b32 v30, 16, v0
v_add_u32 v26, v26, v30
v_lshl_add_u32 v31, v30, 1, v31
v_and_b32 v30, 1, v0
v_lshl_add_u32 v26, v30, 5, v26
v_lshl_add_u32 v31, v30, 4, v31
v_lshl_add_u32 v22, v29, 6, v31
v_xor_b32 v23, 1, v29
v_lshl_add_u32 v23, v23, 6, v31
v_xor_b32 v24, 2, v29
v_lshl_add_u32 v24, v24, 6, v31
v_xor_b32 v25, 3, v29
v_lshl_add_u32 v25, v25, 6, v31
v_lshrrev_b32 v29, 1, v29
s_and_b32 s81, s68, 1
v_xor_b32 v29, s81, v29
v_xor_b32 v30, 1, v29
v_lshl_add_u32 v27, v30, 6, v26
v_lshl_add_u32 v26, v29, 6, v26
s_xor_b32 s81, s68, 1
s_mul_i32 s41, s81, 40960
s_sub_u32 s41, s41, s70
s_xor_b32 s81, s68, 2
s_mul_i32 s42, s81, 40960
s_sub_u32 s42, s42, s70
s_xor_b32 s81, s68, 3
s_mul_i32 s43, s81, 40960
s_sub_u32 s43, s43, s70
s_lshl_b32 s81, s4, 2
s_add_u32 s82, s81, s7
s_lshl_b32 s82, s82, 2
s_add_u32 s82, s82, s3
s_lshl_b32 s82, s82, 6
s_and_b32 s44, s6, 7
s_add_u32 s44, s82, s44
s_lshl_b32 s44, s44, 2
s_add_u32 s44, s44, 0x240000
s_lshr_b32 s82, s63, 1
s_add_u32 s82, s82, s81
s_lshl_b32 s82, s82, 2
s_add_u32 s82, s82, s68
s_lshl_b32 s45, s82, 8
s_add_u32 s45, s45, 0x240000
s_lshl_b32 s79, s68, 6
s_lshl_b32 s81, s4, 3
s_lshl_b32 s82, s7, 1
s_add_u32 s81, s81, s82
s_add_u32 s81, s81, s69
s_lshl_b32 s81, s81, 5
s_add_u32 s81, s81, s6
s_lshl_b32 s81, s81, 12
s_and_b32 s82, s68, 1
s_lshl_b32 s82, s82, 11
s_add_u32 s46, s81, s82
s_add_u32 s46, s46, 0x1000
s_lshl_b32 s81, s63, 1
s_add_u32 s81, s81, s69
s_lshl_b32 s81, s81, 17
s_lshl_b32 s82, s4, 11
s_add_u32 s81, s81, s82
s_lshl_b32 s82, s62, 7
s_add_u32 s81, s81, s82
s_and_b32 s82, s68, 1
s_lshl_b32 s82, s82, 6
s_add_u32 s47, s81, s82
s_mov_b32 s48, 0x3e0293ee
"""
for l in P2.strip().split("\n"): e(l)
for r in (1,2,3): e(f"s_xor_b32 s{49+r}, s71, {r<<17}")
e("s_lshl_b32 s40, s7, 5")
for r in range(4): e(f"v_xor_b32 v{18+r}, s40, v{18+r}")
e("s_lshl_b32 s82, s62, 1"); e("s_add_u32 s82, s82, s63")
for i in range(8):
    if OPT.get("rot",1): e(f"s_add_u32 s81, s82, {i}"); e("s_and_b32 s81, s81, 7"); e(f"s_lshl_b32 s{HD+i}, s81, 18")
    else: e(f"s_mov_b32 s{HD+i}, {i<<18}")
if OPT.get("warm", 1):
    for l in ["s_lshl_b32 s81, s68, 21", "s_mov_b32 s82, 0x242000", "buffer_load_dword v30, off, s[24:27], s81", "buffer_load_dword v30, off, s[16:19], s76",
              "buffer_load_dword v30, off, s[20:23], s77", "buffer_load_dword v30, off, s[28:31], 0", "buffer_load_dword v30, off, s[28:31], s82",
              "buffer_load_dword v30, off, s[32:35], s47"] + (["buffer_load_dword v30, off, s[64:67], s79 sc1"] if OPT["warm"] == 2 else []): e(l)

BT = [1, 2, 3, 0]
qacc = {}
i = 0
for bt in BT:
    for t in range(4):
        if bt == 1 and t < 2: qacc[bt, t] = ("a", 160 + 16 * t)
        else: qacc[bt, t] = ("v", 32 + 16 * i); i += 1
def R(x, n): return f"{x[0]}[{x[1]}:{x[1]+n-1}]"
KREG = {1: 0, 2: 32, 3: 0, 0: 32}
VREG = 192
def rdK(bt):
    kr = []
    for j in range(4):
        ad = 18 + j
        if bt: kr.append(f"v_add_u32 v{29+(j&1)}, s{40+bt}, v{18+j}"); ad = 29 + (j & 1)
        for h in range(2):
            kr.append(lazy(lambda j=j, h=h, ad=ad, bt=bt: f"ds_read_b128 {A(KREG[bt]+16*h+4*j)}, v{ad} offset:{g.slot['K',h]*4096}"))
    return kr
cons = []
qb = {}
def cvts(bt):
    r = []
    order = [2, 3, 0, 1] if bt == 1 else range(4)
    for t in order:
        k, b = qacc[bt, t]
        if k == "v":
            qb[bt, t] = b
            r += [f"v_cvt_pk_bf16_f32 v{b+j}, v{b+2*j}, v{b+2*j+1}" for j in range(8)]
        else:
            d = qacc[bt, t + 2][1] + 8; qb[bt, t] = d
            for j in range(8):
                tm = 1 + 2 * (j % 4)
                r += [f"v_accvgpr_read_b32 v{tm}, a{b+2*j}", f"v_accvgpr_read_b32 v{tm+1}, a{b+2*j+1}",
                      f"v_cvt_pk_bf16_f32 v{d+j}, v{tm}, v{tm+1}"]
    return r
E16 = [[]]*16
def sp(l, lo, hi, n): return spread(l, lo, hi, n) if l else [[]]*n
def upto(it, extra=0):
    return max(0, stream.index(it) + 1 + extra - nxt[0])
WREG = lambda i: {15: 192}.get(i, 128 + 16*(i & 1))
LA = OPT.get("la", 4)
hx, hw = [], []
for it in S0:
    for f in issue(upto(it, OPT.get("la0", 3))): g.run(f)
    g.run(wait(it))
    if it[0] == "W":
        for f in rdW(it, WREG(it[1])): g.run(f)
        hw.append(it[1]); new = [(bt, it[1]) for bt in hx]
    elif it[0] == "X":
        for f in rdX(it, 16*it[2]): g.run(f)
        hx.append(it[2]); new = [(it[2], w) for w in hw]
    else: new = []
    if it == S0[-1]: cons = [it]; break
    e("s_waitcnt lgkmcnt(0)"); stamp(); rel(it)
    for bt, w in new:
        for t_ in range(4): e(mfma(R(qacc[bt,t_],16), A(WREG(w)+4*t_), A(16*bt+4*w), w == 0))
for s in range(14):
    st, ks = s // 4, s % 4
    e("s_waitcnt lgkmcnt(0)"); stamp(); rel(*cons)
    mf = [mfma(R(qacc[bt,t],16), A(WREG(s)+4*t), A(64*(st&1)+16*bt+4*ks), s == 0) for bt in BT for t in range(4)]
    if s == 0: mf = ["s_nop 0"] * 12 + mf[12:]
    if s == 12:
        for r in range(4): e(f"v_xor_b32 v{18+r}, s40, v{18+r}")
    if s == 8: e("buffer_load_dword v30, off, s[64:67], s79 sc1"); g.last["NON"] = g.vm
    if s == 12:
        g.run(wait("NON"))
        for l in ["v_readfirstlane_b32 s83, v30", "s_cmp_lg_u32 s83, 0", "s_cbranch_scc1 L_gotn", "s_mov_b32 s82, 0"]: e(l)
        g.raw("L_spinn:")
        for l in ["s_sleep 8", "buffer_load_dword v30, off, s[64:67], s79 sc1", "s_add_u32 s82, s82, 1", "s_waitcnt vmcnt(0)",
                  "v_readfirstlane_b32 s83, v30", "s_cmp_lg_u32 s83, 0", "s_cbranch_scc1 L_gotn",
                  "s_cmp_lt_u32 s82, 0x4000", "s_cbranch_scc1 L_spinn"]: g.raw("    " + l)
        g.raw("L_gotn:")
    if EB and B0 <= s < B0 + NB:
        e(f"s_cmp_lg_u32 s71, {s-B0}"); e(f"s_cbranch_scc1 L_nb{s}")
        v0 = g.vm
        for i in range(EB):
            for f in item_ops(("O",i)): g.run(f)
            g.last["O",i] = v0
        g.vm = v0; bpos.append(v0); g.raw(f"L_nb{s}:")
    cons = list(CONS[s])
    n = min(max(upto(c, LA) for c in cons), upto(("W",15)))
    if n == 0 or nxt[0] + n > stream.index(("W",15)): n = max(n, min(OPT.get("opace",2), upto(VI[3])))
    dm = issue(max(min(n, OPT['maxissue']), max(upto(c) for c in cons)))
    rd = []
    for it in cons:
        if it == cons[0]: rd.append(wait(*cons))
        if it[0] == "W": rd += rdW(it, WREG(it[1]))
        elif it[0] == "X": rd += rdX(it, 64*(it[1]&1)+16*it[2])
    plans = [sp(dm, 0, 8, 16), sp(rd, 8 if len(rd) < 16 else 6, 14, 16)]
    block(mf, *plans)
SOWN = qacc[2, 0][1]
sacc = {1: ("a",64), 2: ("a",80), 3: ("a",96), 0: ("v",SOWN)}
ex = {}
def wrpart(bt, src):
    def first():
        ex[bt] = g.free.pop(0)
    return [first] + [lazy(lambda q=q: f"ds_write_b128 v28, {A(src+4*q)} offset:{ex[bt]*4096+q*1024}") for q in range(4)]
g.run(wait(("K",0),("K",1))); e("s_barrier")
cv = []
for n in range(8):
    e("s_waitcnt lgkmcnt(0)"); stamp(); rel(*cons); cons = []
    bt = BT[n & 3]; plans = []
    if n < 4: mf = [mfma(R(qacc[bt,t],16), A(WREG(s)+4*t), A(64+16*bt+4*(s&3)), False) for s in (14,15) for t in range(4)]
    else: mf = [mfma(R(sacc[bt],16), A(KREG[bt]+8*t+4*m), V(qb[bt,t]+4*m), t == 0 and m == 0) for t in range(4) for m in range(2)]
    if 1 <= n <= 4: cv += cvts(BT[n-1])
    q = {1: 24, 2: 28, 3: 28, 4: 28, 5: 28, 6: 24}.get(n, 0)
    if q: plans.append(sp(cv[:q], 2 if n == 1 else 0, 8, 8)); cv = cv[q:]
    if n in (0, 1): plans.append(sp(rdK(BT[n]), 0, 6, 8))
    if n in (5, 6): plans.append(sp(rdK(BT[n-3]), 0, 6, 8))
    if n > 4: plans.append(sp(wrpart(BT[n-5], sacc[BT[n-5]][1]), 3, 7, 8))
    if n == 4: cons = [("O",0),("O",1)]; plans.append(sp([wait(*cons)] + rdO(cons[0],128) + rdO(cons[1],144), 1, 7, 8))
    if n in (6, 7):
        cons = VI[2*(n-6):2*(n-6)+2]
        plans.append(sp([wait(*cons)] + rdX(cons[0], VREG+32*(n-6)) + rdX(cons[1], VREG+32*(n-6)+16), 2, 7, 8))
    ni = {0: 1, 1: 1, 2: 2, 3: 2, 4: 2}.get(n, 0)
    dm = issue(min(ni, upto(VI[3]))) if n < 7 else issue(1, reserve=1)
    plans.append(sp(dm, 0, 8, 8))
    block(mf, *plans)
assert not cv
e("s_waitcnt lgkmcnt(0)")
e("s_barrier"); rel(("K",0),("K",1))
T0 = 208
sm1 = []
for bt in (1,2,3):
    sm1.append(f"v_add_u32 v{bt}, s{40+bt}, v28")
    sm1 += [f"ds_read_b128 {V(T0+16*(bt-1)+4*q)}, v{bt} offset:{ex[bt]*4096+q*1024}" for q in range(4)]
S = SOWN
sm = ["s_waitcnt lgkmcnt(0)"]
for j in range(16): sm.append(f"v_add_f32 v{T0+j}, v{T0+j}, v{T0+16+j}")
for j in range(16): sm.append(f"v_add_f32 v{S+j}, v{S+j}, v{T0+32+j}")
for j in range(16): sm.append(f"v_add_f32 v{S+j}, v{S+j}, v{T0+j}")
sm += [f"v_max3_f32 v1, v{S}, v{S+1}, v{S+2}", f"v_max3_f32 v2, v{S+3}, v{S+4}, v{S+5}"]
for j in range(6,16,4):
    sm.append(f"v_max3_f32 v1, v1, v{S+j}, v{S+j+1}")
    if j+2 < 16: sm.append(f"v_max3_f32 v2, v2, v{S+j+2}, v{S+j+3}")
sm += ["v_max_f32 v1, v1, v2", "v_mov_b32 v2, v1", "v_permlane32_swap_b32 v1, v2", "v_max_f32 v1, v1, v2", "v_mul_f32 v1, s48, v1"]
for j in range(16): sm.append(f"v_fma_f32 v{S+j}, v{S+j}, s48, -v1")
for j in range(16): sm.append(f"v_exp_f32 v{S+j}, v{S+j}")
sm += [f"v_add_f32 v1, v{S}, v{S+1}", f"v_add_f32 v2, v{S+2}, v{S+3}"]
for j in range(4,16,2): sm += [f"v_add_f32 v1, v1, v{S+j}", f"v_add_f32 v2, v2, v{S+j+1}"]
sm += ["v_add_f32 v1, v1, v2", "v_mov_b32 v2, v1", "v_permlane32_swap_b32 v1, v2", "v_add_f32 v1, v1, v2", "v_rcp_f32 v1, v1",
       "v_lshlrev_b32 v3, 4, v0"]
for j in range(16): sm.append(f"v_mul_f32 v{S+j}, v{S+j}, v1")
for j in range(8): sm.append(f"v_cvt_pk_bf16_f32 v{S+j}, v{S+2*j}, v{S+2*j+1}")
def pst(m):
    def f():
        e(f"buffer_store_dwordx4 {V(S+4*m)}, v3, s[28:31], s46 offen offset:{m*1024} sc1"); g.last["PST"] = g.vm
    return f
sm += [pst(0), pst(1)]

ub = {0:(96,128), 1:(160,32), 2:(192,224), 3:(96,128), 4:(160,32), 5:(192,224), 6:(64,128), 7:(224,32)}
ustore = {0:("a",64), 1:("a",96), 2:("a",0)}
def utile(h, tt): return ub[h][tt>>1] + 16*(tt&1)
def ucvt(h):
    r = []; d = ub[h][0]
    for tt in range(4):
        b = utile(h, tt)
        for j in range(8):
            r.append(f"v_cvt_pk_bf16_f32 v{d+8*tt+j}, v{b+2*j}, v{b+2*j+1}")
            if h in ustore: r.append(f"v_accvgpr_write_b32 a{ustore[h][1]+8*tt+j}, v{d+8*tt+j}")
    if h not in ustore: ustore[h] = ("v", d)
    return r
NSM = 3
smparts = [sm[i*len(sm)//NSM:(i+1)*len(sm)//NSM] for i in range(NSM)]
pend_cvt = []
for s in range(16):
    h, half = s // 2, s % 2
    e("s_waitcnt lgkmcnt(0)"); stamp(); rel(*cons)
    if s == NSM + OPT.get('sig',1):
        g.run(wait("PST")); e("s_barrier")
        for bt in (1,2,3): g.free.append(ex[bt])
        for l in ["s_cmp_lg_u32 s68, 0", "s_cbranch_scc1 L_nosig", "s_mov_b64 exec, 1", "v_mov_b32 v1, s83"]: e(l)
        g.raw("    buffer_store_dword v1, off, s[28:31], s44 sc1"); e("s_mov_b64 exec, -1"); g.raw("L_nosig:"); e("s_nop 3")
        pass
    if s == OPT['pollstep']:
        e("v_and_b32 v3, 7, v0"); e("v_lshlrev_b32 v3, 2, v3"); e("buffer_load_dword v2, v3, s[28:31], s45 offen sc1"); g.last["POLL"] = g.vm
    if s == OPT['pollstep'] + 2:
        g.run(wait("POLL"))
        for l in ["v_cmp_ne_u32 vcc, s83, v2", "s_nop 1", "s_cmp_eq_u64 vcc, 0", "s_cbranch_scc1 L_ready", "s_mov_b32 s82, 0"]: e(l)
        g.raw("L_spin:")
        for l in ["s_sleep 8", "buffer_load_dword v2, v3, s[28:31], s45 offen sc1", "s_add_u32 s82, s82, 1", "s_waitcnt vmcnt(0)",
                  "v_cmp_ne_u32 vcc, s83, v2", "s_nop 1", "s_cmp_eq_u64 vcc, 0", "s_cbranch_scc1 L_ready",
                  "s_cmp_lt_u32 s82, 0x4000", "s_cbranch_scc1 L_spin"]: g.raw("    " + l)
        g.raw("L_ready:"); gate["P"] = True
        for l in ["s_lshl_b32 s81, s69, 11", "v_add_u32 v18, s81, v28", "v_xor_b32 v19, 0x800, v18", "v_lshl_add_u32 v17, v0, 4, s57"]: e(l)
        pass
    wb = 128 + 32 * (s & 1)
    mf = [mfma(V(utile(h,2*b+nt),16), A(VREG+32*b+16*half+4*k), A(wb+8*k+4*nt), half == 0 and k == 0)
          for k in range(4) for b in range(2) for nt in range(2)]
    dm = issue(3 if s < OPT.get('u3',2) else 2)
    wn = 128 + 32 * ((s + 1) & 1)
    if s < 15:
        cons = [("O",2*s+2),("O",2*s+3)]; rd = [wait(*cons)] + rdO(cons[0], wn) + rdO(cons[1], wn+16)
    else:
        cons = [("P",0),("P",1)]; rd = [wait(*cons)] + rdP(cons[0], wn) + rdP(cons[1], wn+16)
    plans = [spread(dm, 0, 8, 16) if dm else [[]]*16, spread(rd, 7, 14, 16)]
    if half == 0 and h > 0: pend_cvt += ucvt(h-1)
    if pend_cvt and s >= NSM:
        n = 44 if s < 6 else (len(pend_cvt) // 2 if half == 0 else len(pend_cvt))
        plans.append(spread(pend_cvt[:n], 3 if half == 0 and s >= 6 else 0, 16, 16)); pend_cvt = pend_cvt[n:]
        if s == 5: assert not pend_cvt
    if s == 0: plans = [spread(sm1, 0, 3, 16)] + plans + [spread(smparts[0], 5, 16, 16)]
    elif s < NSM: plans.append(spread(smparts[s], 0, 16, 16))
    block(mf, *plans)
pass
OOWN = 128
oacc = {0: ("v",OOWN), 1: ("a",192), 2: ("a",208), 3: ("a",224)}
PB = [128, 160, 128, 32]
def omf(h, tt, m):
    u = ustore[h]
    return mfma(R(oacc[tt],16), R((u[0],u[1]+8*tt+4*m),4), A(PB[h//2]+16*(h&1)+8*(tt>>1)+4*m), h == 0 and m == 0)
for s in range(2):
    e("s_waitcnt lgkmcnt(0)"); stamp(); rel(*cons)
    plans = []
    if s == 0: plans.append(spread(ucvt(7), 3, 16, 16))
    mf = [omf(2*s+hh, tt, m) for hh in range(2) for m in range(2) for tt in range(4)]
    plans.append(sp(issue(99), 0, 8, 16))
    cons = [("P",i) for i in (range(2,4) if s == 0 else range(4,8))]
    rd = [wait(*cons)]
    for it in cons: rd += rdP(it, PB[it[1]//2]+16*(it[1]&1))
    plans.append(spread(rd, 6, 14, 16))
    block(mf, *plans)
e("s_waitcnt lgkmcnt(0)"); stamp(); rel(*cons)
T0 = 32
mf = [omf(h, tt, m) for tt in (1,2,3,0) for h in range(4,8) for m in range(2)]
adr = ["v_and_b32 v4, 31, v0", "v_lshrrev_b32 v5, 5, v0", "v_lshlrev_b32 v4, 12, v4", "v_lshl_add_u32 v4, v5, 5, v4"]
adr += [f"v_add_u32 v{tt}, s{40+tt}, v28" for tt in (1,2,3)]
plans = [spread(adr, 0, 7, 32), spread(wrpart(1, oacc[1][1]), 19, 22, 32), spread(wrpart(2, oacc[2][1]), 22, 25, 32)]
TB = {1: 32, 2: 48, 3: 144}
fin = ["s_nop 7"] + wrpart(3, oacc[3][1])
p = [[] for _ in range(32)]; p[25] = fin; p[27] = ["s_waitcnt lgkmcnt(0)", "s_barrier"] + \
    [lazy(lambda tt=tt, q=q: f"ds_read_b128 {V(TB[tt]+4*q)}, v{tt} offset:{ex[tt]*4096+q*1024}") for tt in (1,2,3) for q in range(4)]
plans.append(p)
block(mf, *plans)
e("s_waitcnt lgkmcnt(0)"); stamp()
S = OOWN
for j in range(0,16,2): e(f"v_pk_add_f32 {V(32+j,2)}, {V(32+j,2)}, {V(48+j,2)}")
for j in range(0,16,2): e(f"v_pk_add_f32 {V(32+j,2)}, {V(32+j,2)}, {V(144+j,2)}")
for j in range(0,16,2): e(f"v_pk_add_f32 {V(S+j,2)}, {V(S+j,2)}, {V(32+j,2)}")
for j in range(8): e(f"v_cvt_pk_bf16_f32 v{S+j}, v{S+2*j}, v{S+2*j+1}")
for m in range(2): e(f"buffer_store_dwordx4 {V(S+4*m)}, v4, s[32:35], s47 offen offset:{16*m}" + {0:"",1:" sc1",2:" nt",3:" sc0 sc1"}[OPT.get("of",0)])
if OPT['stamp']:
    e("s_waitcnt vmcnt(0) lgkmcnt(0)"); stamp(); e("s_memrealtime s[38:39]"); e("s_waitcnt lgkmcnt(0)"); stamp()
    for l in ["v_writelane_b32 v31, s86, 1", "v_writelane_b32 v31, s88, 2", "v_writelane_b32 v31, s100, 0", "v_writelane_b32 v31, s38, 63",
              f"s_mov_b32 s81, {nst[0]-1}", "v_writelane_b32 v31, s81, 62",
              "s_lshl_b32 s82, s2, 2", "s_add_u32 s82, s82, s68", "s_lshl_b32 s82, s82, 8", "s_add_u32 s82, s82, 0x280000", "s_mov_b32 s30, 0x2c0000",
              "v_lshlrev_b32 v1, 2, v0", "buffer_store_dword v31, v1, s[28:31], s82 offen"]: e(l)
assert nxt[0] == len(stream)

hdr = open(f"cdna_kernels/{NAME}.s.ref").read().split("; Override launch")[0]
txt = hdr + f"""; @launch grid=(256,1,1) block=(256,1,1) lds=163840
.amdgcn_target "amdgcn-amd-amdhsa--gfx950"
.text
.globl {NAME}_kernel
.p2align 8
.type {NAME}_kernel,@function
{NAME}_kernel:
""" + "\n".join(g.out) + f"""
L_end:
    s_endpgm
.section .rodata,"a"
.p2align 6
.amdhsa_kernel {NAME}_kernel
  .amdhsa_next_free_vgpr 512
  .amdhsa_next_free_sgpr 102
  .amdhsa_accum_offset 256
  .amdhsa_group_segment_fixed_size 0
  .amdhsa_kernarg_size 104
  .amdhsa_user_sgpr_count 2
  .amdhsa_user_sgpr_kernarg_segment_ptr 1
  .amdhsa_system_sgpr_workgroup_id_x 1
.end_amdhsa_kernel
"""
open(sys.argv[1], "w").write(txt)
```

```python
import re, sys
NAME = "concat_heads__gqa_block_cached__gqa_block_cached__near_ridge"
OPT = dict(warm=0, dbl=0, tat=9, early=2, stamp=0, nslots=10, pollstep=9, maxissue=3)
for a in sys.argv[2:]:
    k, v = a.split("="); OPT[k] = int(v)
AREA = 40960

def regs(tok):
    tok = tok.strip()
    m = re.fullmatch(r"-?([va])\[(\d+):(\d+)\]", tok)
    if m: return [m.group(1) + str(i) for i in range(int(m.group(2)), int(m.group(3)) + 1)]
    m = re.fullmatch(r"-?([va])(\d+)", tok)
    if m: return [m.group(1) + m.group(2)]
    return []

class Gen:
    def __init__(s):
        s.out = []; s.ws = 0
        s.mf_w = {}; s.va_w = {}; s.mf_c = {}; s.tr_w = {}; s.st_r = {}
        s.vm = 0
        s.free = list(range(OPT['nslots'])); s.slot = {}; s.last = {}
        s.pend_lds = set()
    def raw(s, t): s.out.append(t)
    def e(s, t):
        op = t.split()[0]
        if OPT.get('nomfma') and op.startswith("v_mfma"): return
        if OPT.get('nods') and op.startswith("ds_read"): return
        if OPT.get('nodma') and " lds" in t and s.vm > 40: s.vm += 1; return
        ops = [x.strip() for x in t[len(op):].split(",")]
        ops = [o.split()[0] if o else o for o in ops]
        need = 0
        def chk(tab, rs, n):
            nonlocal need
            for r in rs:
                if r in tab: need = max(need, n - (s.ws - tab[r]))
        if op.startswith("v_mfma"):
            d, a, b, c = regs(ops[0]), regs(ops[1]), regs(ops[2]), regs(ops[3])
            chk(s.va_w, a + b + c, 2); chk(s.mf_w, a + b, 12)
            if c != d: chk(s.mf_w, c + d, 12)
            rd, wr = a + b + c, d
        elif op.startswith("v_"):
            wr = regs(ops[0]); rd = sum((regs(o) for o in ops[1:]), [])
            if op.startswith("v_fmac") or op.startswith("v_permlane"): rd += wr
            if op.startswith("v_permlane"): wr = wr + regs(ops[1]); chk(s.va_w, rd, 2)
            if op.startswith("v_readfirstlane"): chk(s.va_w, rd, 1)
            chk(s.mf_w, rd + wr, 12); chk(s.mf_c, wr, 7); chk(s.st_r, wr, 2)
            if not re.match(r"v_(exp|rcp|log)", op): chk(s.tr_w, rd, 1)
        elif op.startswith("ds_read") or (op.startswith("buffer_load") and " lds" not in t):
            wr = regs(ops[0]); rd = regs(ops[1]); chk(s.mf_w, rd + wr, 12); chk(s.st_r, wr, 1)
        elif op.startswith("ds_write") or op.startswith("buffer_"):
            wr = []; rd = sum((regs(o) for o in ops[:2]), []); chk(s.mf_w, rd, 12)
        else: rd, wr = [], []
        for r in rd + wr:
            assert r not in s.pend_lds or op.startswith("ds_read") and r not in rd and False, ("unwaited lds reg", t)
        if need > 0:
            s.out.append(f"    s_nop {need-1}"); s.ws += need
            if OPT.get('verbose'): print("nop", need, "before", t, file=sys.stderr)
        s.out.append("    " + t); s.ws += 1
        if op == "s_nop": s.ws += int(ops[0])
        if op.startswith("v_mfma"):
            for r in wr: s.mf_w[r] = s.ws
            for r in regs(ops[3]): s.mf_c[r] = s.ws
        elif op.startswith("v_"):
            for r in wr:
                s.va_w[r] = s.ws; s.mf_w.pop(r, None)
                if re.match(r"v_(exp|rcp|log)", op): s.tr_w[r] = s.ws
                else: s.tr_w.pop(r, None)
        if op.startswith("ds_read"): s.pend_lds |= set(wr)
        if op.startswith("s_waitcnt") and "lgkmcnt(0)" in t: s.pend_lds = set()
        if op.startswith("buffer_store"):
            for r in regs(ops[0]): s.st_r[r] = s.ws
        if op.startswith("buffer_"): s.vm += 1
    def run(s, f):
        if callable(f): f()
        else: s.e(f)
g = Gen(); e = g.e

EARLY = {0: [], 1: [3], 2: [2, 3], 3: [1, 2, 3], 4: [3, 3]}[OPT.get("early", 0)]
S0 = [("X",0,1),("W",0),("X",0,2),("W",1),("X",0,3),("X",0,0),("W",2)]
stream = list(S0)
CONS = {}
for st in range(14):
    CONS[st] = [("W",st+1)] + ([("X", st//4+1, st%4)] if st < 12 else [])
CONS[13].append(("W",15))
CONS[2] = [("W",3),("X",1,1),("X",1,2)]; CONS[3] = [("W",4),("X",1,3),("X",1,0)]
for j in range(4):
    cl = [("W",4*j+4)] if j < 3 else []
    sc = ([("LX",j+2)] if j < 2 else []) + ([("T",),("TV",)] if j == OPT.get("tat",2) else [])
    stream += cl + sc + [("O",i) for i, x in enumerate(EARLY) if x == j]
    CONS[max(4*j,2)] = sc + CONS[max(4*j,2)]
    if j == 0: stream += [("W",3),("X",1,1),("X",1,2),("X",1,3),("X",1,0)]
    elif j < 3: stream += [("W",4*j+1),("X",j+1,0),("W",4*j+2),("X",j+1,1),("W",4*j+3),("X",j+1,2),("X",j+1,3)]
    else: stream += [("W",13),("K",0),("K",1),("W",14),("W",15)]
EB = OPT.get("eb", 0); B0 = OPT.get("b0", 5)
VI = [("V",b,h) for b in (1,0) for h in range(2)]
stream += [("O",i) for i in range(len(EARLY), 4)] + VI + [("O",i) for i in range(4,32)] + [("P",i) for i in range(8)]
bpos = []; NB = OPT.get("nb", 8)
nxt = [0]; gate = {"P": False}
SOFF = "s80"
STX, STW, HD = 49, 53, 90
ORD = {0:[[0,1,2,3]]*4, 1:[[0,1,2,3],[1,2,3,0],[2,3,0,1],[3,0,1,2]], 2:[[0,1,2,3],[0,2,3,1],[1,0,3,2],[1,3,2,0]], 3:[[0,1,2,3],[0,1,2,3],[1,0,3,2],[1,0,3,2]]}[OPT.get("ord",0)]
def item_ops(it):
    k = it[0]
    def head():
        if it not in g.slot: g.slot[it] = g.free.pop(0)
        sl = g.slot[it]
        e(f"s_add_u32 m0, s70, {sl*4096}")
        if k == "X": e(f"s_add_u32 {SOFF}, s{72+it[2]}, {it[1]*128}")
        elif k == "W": e(f"s_add_u32 {SOFF}, s{[71,50,51,52][it[1]%4]}, {it[1]//4*524288}")
        elif k == "K": e(f"s_add_u32 {SOFF}, s76, {it[1]*128}")
        elif k == "T": e("s_and_b32 s81, s6, 7"); e("s_lshl_b32 s81, s81, 10"); e(f"s_add_u32 {SOFF}, s76, s81"); e("v_lshlrev_b32 v29, 4, v0")
        elif k == "TX":
            for l in ["s_lshl_b32 s81, s5, 2", "s_add_u32 s81, s81, s68", "s_lshl_b32 s81, s81, 13", f"s_add_u32 {SOFF}, s81, {it[1]*4096}", "v_lshlrev_b32 v18, 4, v0"]: e(l)
        elif k == "LX":
            for l in ["s_and_b32 s81, s6, 7", "s_lshl_b32 s81, s81, 15", f"s_add_u32 {SOFF}, s81, {it[1]*128}"]: e(l)
        elif k == "TV":
            for l in ["s_and_b32 s81, s62, 1", "s_lshl_b32 s81, s81, 7", "s_bitcmp1_b32 s62, 1", "s_cselect_b32 s82, s78, s77", f"s_add_u32 {SOFF}, s82, s81"]: e(l)
        elif k == "V": e(f"s_add_u32 {SOFF}, s{77+it[1]}, {it[2]*128}")
        elif k == "O": e(f"s_add_u32 {SOFF}, s{HD+it[1]//4}, {it[1]%4*32*2048}")
        elif k == "P": e(f"s_lshr_b32 {SOFF}, s{HD+it[1]}, 6")
    vb, srd = dict(X=(1,8), W=(5,12), K=(9,16), V=(9,20), O=(13,24), P=(17,28), T=(29,16), TV=(9,20), TX=(18,8), LX=(1,8))[k]
    def dma(i):
        def f():
            if i == 0: head()
            v = vb if k in ("P","TX") else vb + i
            fl = " sc1" if k == "P" else (" nt" if (k == "W" and OPT.get("ntw",0)) or (k == "X" and OPT.get("ntx",0)) else "")
            lead = (k == "W" and it[1] % 4 == 0) or (k == "O" and it[1] < OPT.get("do",4)) or (k == "X" and it[1] < OPT.get("dx",0)) or (k == "LX" and OPT.get("dt",0))
            if lead and OPT.get("dbl",1): e(f"buffer_load_dwordx4 v{v}, s[{srd}:{srd+3}], {SOFF} offen offset:{i*1024} nt lds")
            e(f"buffer_load_dwordx4 v{v}, s[{srd}:{srd+3}], {SOFF} offen offset:{i*1024}{fl} lds")
            if k == "W" and i == 3 and OPT.get("qp",0):
                e("s_add_u32 m0, m0, s40"); e("s_nop 0"); e(f"buffer_load_dwordx4 v17, s[{srd}:{srd+3}], {SOFF} offen lds")
            g.last[it] = g.vm
        return f
    return [dma(i) for i in range({"T": 1, "LX": 2}.get(k, 4))]
def issue(n, reserve=0):
    r = []; avail = len(g.free) - reserve
    while n > 0 and avail > 0 and nxt[0] < len(stream):
        it = stream[nxt[0]]
        if it[0] == "P" and not gate["P"]: break
        r += item_ops(it); nxt[0] += 1; n -= 1; avail -= 1
    return r
def wait(*its):
    def f():
        l = max(g.last[it] for it in its); n = g.vm - l
        cl = [c for c, p in enumerate(bpos) if p >= l and not (its[0][0] == "O" and its[0][1] < EB)]
        if cl and n < 63:
            lab = f"L_w{len(g.out)}"
            e(f"s_sub_u32 s81, s71, {cl[0]}"); e(f"s_cmp_le_u32 s81, {cl[-1]-cl[0]}"); e(f"s_waitcnt vmcnt({min(n+8*EB,63)})")
            e(f"s_cbranch_scc1 {lab}"); e(f"s_waitcnt vmcnt({n})"); g.raw(lab + ":")
        else: e(f"s_waitcnt vmcnt({min(n,63)})")
    return f
def rel(*its):
    for it in its: g.free.append(g.slot.pop(it))
def A(b, n=4): return f"a[{b}:{b+n-1}]"
def V(b, n=4): return f"v[{b}:{b+n-1}]"
def lazy(fn): return lambda: e(fn())
def rdX(it, dst, addr=18):
    return [lazy(lambda ks=ks: f"ds_read_b128 {A(dst+4*ks)}, v{addr+ks} offset:{g.slot[it]*4096}") for ks in range(4)]
def rdW(it, dst):
    return [lazy(lambda t=t, rd=rd: f"ds_read_b64_tr_b16 {A(dst+4*t+2*rd,2)}, v{22+t} offset:{g.slot[it]*4096+rd*1024}")
            for t in range(4) for rd in range(2)]
def rdO(it, dst):
    return [lazy(lambda k=k, nt=nt, rd=rd: f"ds_read_b64_tr_b16 {A(dst+8*k+4*nt+2*rd,2)}, v{26+nt} offset:{g.slot[it]*4096+k*2048+rd*512}")
            for k in range(2) for nt in range(2) for rd in range(2)]
def rdP(it, dst):
    return [lazy(lambda b=b, m=m: f"ds_read_b128 {A(dst+8*b+4*m)}, v{18+b} offset:{g.slot[it]*4096+m*1024}")
            for b in range(2) for m in range(2)]
def spread(lst, lo, hi, n):
    r = [[] for _ in range(n)]
    for i, f in enumerate(lst): r[lo + i * (hi - lo) // len(lst)].append(f)
    return r
def block(mf, *plans):
    for i, m in enumerate(mf):
        e(m)
        for p in plans:
            for f in p[i]: g.run(f)
def mfma(d, a, b, first): return f"v_mfma_f32_32x32x16_bf16 {d}, {a}, {b}, {'0' if first else d}"
nst = [0]
def stamp(fine=False):
    if OPT['stamp']:
        if nst[0] >= 3: e(f"v_writelane_b32 v31, s84, {nst[0]}")
        nst[0] += 1
        r = {1: 86, 2: 88}.get(nst[0], 84)
        e(f"s_memtime s[{r}:{r+1}]")
P = """
s_cmp_ge_u32 s2, 256
s_cbranch_scc1 L_end
s_load_dwordx16 s[36:51], s[0:1], 0
s_load_dwordx8 s[52:59], s[0:1], 64
s_load_dwordx2 s[60:61], s[0:1], 96
s_memrealtime s[98:99]
v_lshrrev_b32 v29, 6, v0
v_and_b32 v0, 63, v0
v_readfirstlane_b32 s68, v29
s_and_b32 s3, s2, 3
s_bfe_u32 s4, s2, 0x10002
s_lshr_b32 s5, s2, 3
s_and_b32 s6, s5, 7
s_lshl_b32 s7, s3, 3
s_add_u32 s6, s6, s7
s_lshr_b32 s7, s5, 3
s_mul_i32 s70, s68, 40960
SAME
v_lshrrev_b32 v29, 3, v0
v_and_b32 v30, 7, v0
v_lshrrev_b32 v31, 4, v0
v_xor_b32 v9, v30, v31
v_xor_b32 v10, 4, v9
v_lshlrev_b32 v9, 4, v9
v_lshlrev_b32 v10, 4, v10
s_lshl_b32 s81, s7, 18
s_lshl_b32 s82, s68, 9
s_add_u32 s81, s81, s82
v_lshl_add_u32 v1, v29, 11, s81
v_add_u32 v2, v1, v10
v_add_u32 v1, v1, v9
v_add_u32 v2, 15360, v2
v_add_u32 v3, 30720, v1
v_add_u32 v4, 30720, v2
v_and_b32 v5, 15, v0
v_lshlrev_b32 v6, 2, v31
v_xor_b32 v5, v5, v6
v_lshlrev_b32 v5, 4, v5
v_lshl_add_u32 v5, v31, 13, v5
s_lshl_b32 s81, s68, 21
s_lshl_b32 s82, s6, 8
s_add_u32 s81, s81, s82
v_add_u32 v5, s81, v5
v_add_u32 v6, 31744, v5
v_add_u32 v7, 63488, v5
v_add_u32 v8, 95232, v5
s_lshl_b32 s71, s7, 17
s_lshl_b32 s72, s68, 16
s_xor_b32 s73, s72, 0x10000
s_xor_b32 s74, s72, 0x20000
s_xor_b32 s75, s72, 0x30000
s_mov_b32 s10, 0x100000
s_mov_b32 s11, 0x20000
s_mov_b32 s14, 0x800000
s_mov_b32 s15, 0x20000
s_cmp_eq_u32 s4, 0
s_waitcnt lgkmcnt(0)
s_cselect_b32 s8, s36, s46
s_cselect_b32 s9, s37, s47
s_cselect_b32 s12, s42, s52
s_cselect_b32 s13, s43, s53
"""
SEL = """
s_cselect_b32 s16, s38, s48
s_cselect_b32 s17, s39, s49
s_cselect_b32 s20, s40, s50
s_cselect_b32 s21, s41, s51
s_cselect_b32 s24, s44, s54
s_cselect_b32 s25, s45, s55
"""
stamp()
P = P.replace("SAME\n", {0:"", 1:"s_mov_b32 s6, 0\ns_mov_b32 s62, 0\n", 2:"s_and_b32 s6, s6, 1\ns_and_b32 s62, s62, 1\n"}[OPT.get('same',0)])
for l in P.strip().split("\n"): e(l)
if OPT['stamp']: e("s_memrealtime s[100:101]")
stamp()
for f in issue(3): g.run(f)
e("s_cmp_eq_u32 s4, 0")
for l in SEL.strip().split("\n"): e(l)
for l in ["s_mov_b32 s28, s60", "s_mov_b32 s29, s61", "s_mov_b32 s32, s56", "s_mov_b32 s33, s57", "s_mov_b32 s64, s58", "s_mov_b32 s65, s59"]: e(l)
for l in ["s_mov_b32 s66, 256", "s_mov_b32 s67, 0x20000", "s_or_b32 s81, s2, s68", "s_cbranch_scc1 L_nonon", "s_or_b32 s98, s98, 1", "v_mov_b32 v18, s98",
          "v_lshlrev_b32 v19, 6, v0", "s_mov_b64 exec, 15"]: e(l)
g.raw("    buffer_store_dword v18, v19, s[64:67], 0 offen sc1"); e("s_mov_b64 exec, -1"); g.raw("L_nonon:")
P2 = """
s_and_b32 s62, s5, 3
s_lshl_b32 s63, s3, 2
s_add_u32 s62, s62, s63
s_lshr_b32 s63, s5, 2
s_mov_b32 s18, 0x80000
s_mov_b32 s19, 0x20000
s_mov_b32 s22, 0x80000
s_mov_b32 s23, 0x20000
s_mov_b32 s26, 0x800000
s_mov_b32 s27, 0x20000
s_mov_b32 s30, 0x243000
s_mov_b32 s31, 0x20000
s_mov_b32 s34, 0x200000
s_mov_b32 s35, 0x20000
v_and_b32 v13, 1, v31
v_lshlrev_b32 v13, 2, v13
v_xor_b32 v13, v13, v30
v_lshlrev_b32 v13, 4, v13
v_lshl_add_u32 v13, v29, 11, v13
s_lshl_b32 s81, s68, 21
s_lshl_b32 s82, s62, 7
s_add_u32 s81, s81, s82
v_add_u32 v13, s81, v13
v_add_u32 v14, 15360, v13
v_add_u32 v15, 30720, v13
v_add_u32 v16, 46080, v13
v_lshl_add_u32 v9, v29, 8, v9
v_lshl_add_u32 v10, v29, 8, v10
v_add_u32 v10, 1024, v10
v_add_u32 v11, 2048, v9
v_add_u32 v12, 2048, v10
s_lshl_b32 s76, s7, 2
s_add_u32 s76, s76, s68
s_lshl_b32 s76, s76, 15
s_lshl_b32 s81, s3, 13
s_add_u32 s76, s76, s81
s_lshr_b32 s69, s68, 1
s_lshl_b32 s77, s63, 1
s_add_u32 s77, s77, s69
s_lshl_b32 s77, s77, 15
s_lshl_b32 s81, s68, 13
s_add_u32 s77, s77, s81
s_xor_b32 s78, s77, 0x8000
s_lshl_b32 s81, s4, 3
s_add_u32 s81, s81, s63
s_lshl_b32 s81, s81, 17
s_lshl_b32 s82, s68, 15
s_add_u32 s81, s81, s82
s_add_u32 s57, s81, 0x1000
v_lshl_add_u32 v28, v0, 4, s70
v_and_b32 v29, 31, v0
v_lshrrev_b32 v30, 5, v0
v_bfe_u32 v31, v0, 1, 3
v_xor_b32 v31, v31, v30
v_lshl_add_u32 v29, v29, 7, s70
v_lshl_add_u32 v18, v31, 4, v29
v_xor_b32 v19, 2, v31
v_lshl_add_u32 v19, v19, 4, v29
v_xor_b32 v20, 4, v31
v_lshl_add_u32 v20, v20, 4, v29
v_xor_b32 v21, 6, v31
v_lshl_add_u32 v21, v21, 4, v29
v_bfe_u32 v29, v0, 2, 2
v_lshl_add_u32 v30, v30, 3, v29
v_bfe_u32 v31, v0, 1, 1
v_lshlrev_b32 v31, 3, v31
v_add_u32 v31, s70, v31
v_lshl_add_u32 v26, v30, 7, v31
v_lshl_add_u32 v31, v30, 8, v31
v_and_b32 v30, 16, v0
v_add_u32 v26, v26, v30
v_lshl_add_u32 v31, v30, 1, v31
v_and_b32 v30, 1, v0
v_lshl_add_u32 v26, v30, 5, v26
v_lshl_add_u32 v31, v30, 4, v31
v_lshl_add_u32 v22, v29, 6, v31
v_xor_b32 v23, 1, v29
v_lshl_add_u32 v23, v23, 6, v31
v_xor_b32 v24, 2, v29
v_lshl_add_u32 v24, v24, 6, v31
v_xor_b32 v25, 3, v29
v_lshl_add_u32 v25, v25, 6, v31
v_lshrrev_b32 v29, 1, v29
s_and_b32 s81, s68, 1
v_xor_b32 v29, s81, v29
v_xor_b32 v30, 1, v29
v_lshl_add_u32 v27, v30, 6, v26
v_lshl_add_u32 v26, v29, 6, v26
s_xor_b32 s81, s68, 1
s_mul_i32 s41, s81, 40960
s_sub_u32 s41, s41, s70
s_xor_b32 s81, s68, 2
s_mul_i32 s42, s81, 40960
s_sub_u32 s42, s42, s70
s_xor_b32 s81, s68, 3
s_mul_i32 s43, s81, 40960
s_sub_u32 s43, s43, s70
s_lshl_b32 s81, s4, 2
s_add_u32 s82, s81, s7
s_lshl_b32 s82, s82, 2
s_add_u32 s82, s82, s3
s_lshl_b32 s82, s82, 6
s_and_b32 s44, s6, 7
s_add_u32 s44, s82, s44
s_lshl_b32 s44, s44, 2
s_add_u32 s44, s44, 0x240000
s_lshr_b32 s82, s63, 1
s_add_u32 s82, s82, s81
s_lshl_b32 s82, s82, 2
s_add_u32 s82, s82, s68
s_lshl_b32 s45, s82, 8
s_add_u32 s45, s45, 0x240000
s_lshl_b32 s79, s68, 6
s_lshl_b32 s81, s4, 3
s_lshl_b32 s82, s7, 1
s_add_u32 s81, s81, s82
s_add_u32 s81, s81, s69
s_lshl_b32 s81, s81, 5
s_add_u32 s81, s81, s6
s_lshl_b32 s81, s81, 12
s_and_b32 s82, s68, 1
s_lshl_b32 s82, s82, 11
s_add_u32 s46, s81, s82
s_add_u32 s46, s46, 0x1000
s_lshl_b32 s81, s63, 1
s_add_u32 s81, s81, s69
s_lshl_b32 s81, s81, 17
s_lshl_b32 s82, s4, 11
s_add_u32 s81, s81, s82
s_lshl_b32 s82, s62, 7
s_add_u32 s81, s81, s82
s_and_b32 s82, s68, 1
s_lshl_b32 s82, s82, 6
s_add_u32 s47, s81, s82
s_mov_b32 s48, 0x3e0293ee
"""
for l in P2.strip().split("\n"): e(l)
for r in (1,2,3): e(f"s_xor_b32 s{49+r}, s71, {r<<17}")
e("s_lshl_b32 s40, s7, 5")
for r in range(4): e(f"v_xor_b32 v{18+r}, s40, v{18+r}")
e("s_lshl_b32 s82, s62, 1"); e("s_add_u32 s82, s82, s63")
for i in range(8):
    if OPT.get("rot",1): e(f"s_add_u32 s81, s82, {i}"); e("s_and_b32 s81, s81, 7"); e(f"s_lshl_b32 s{HD+i}, s81, 18")
    else: e(f"s_mov_b32 s{HD+i}, {i<<18}")
if OPT.get("warm", 1):
    for l in ["s_lshl_b32 s81, s68, 21", "s_mov_b32 s82, 0x242000", "buffer_load_dword v30, off, s[24:27], s81", "buffer_load_dword v30, off, s[16:19], s76",
              "buffer_load_dword v30, off, s[20:23], s77", "buffer_load_dword v30, off, s[28:31], 0", "buffer_load_dword v30, off, s[28:31], s82",
              "buffer_load_dword v30, off, s[32:35], s47"] + (["buffer_load_dword v30, off, s[64:67], s79 sc1"] if OPT["warm"] == 2 else []): e(l)

BT = [1, 2, 3, 0]
qacc = {}
i = 0
for bt in BT:
    for t in range(4):
        if bt == 1 and t < 2: qacc[bt, t] = ("a", 160 + 16 * t)
        else: qacc[bt, t] = ("v", 32 + 16 * i); i += 1
def R(x, n): return f"{x[0]}[{x[1]}:{x[1]+n-1}]"
KREG = {1: 0, 2: 32, 3: 0, 0: 32}
VREG = 192
def rdK(bt):
    kr = []
    for j in range(4):
        ad = 18 + j
        if bt: kr.append(f"v_add_u32 v{29+(j&1)}, s{40+bt}, v{18+j}"); ad = 29 + (j & 1)
        for h in range(2):
            kr.append(lazy(lambda j=j, h=h, ad=ad, bt=bt: f"ds_read_b128 {A(KREG[bt]+16*h+4*j)}, v{ad} offset:{g.slot['K',h]*4096}"))
    return kr
cons = []
qb = {}
def cvts(bt):
    r = []
    order = [2, 3, 0, 1] if bt == 1 else range(4)
    for t in order:
        k, b = qacc[bt, t]
        if k == "v":
            qb[bt, t] = b
            r += [f"v_cvt_pk_bf16_f32 v{b+j}, v{b+2*j}, v{b+2*j+1}" for j in range(8)]
        else:
            d = qacc[bt, t + 2][1] + 8; qb[bt, t] = d
            for j in range(8):
                tm = 1 + 2 * (j % 4)
                r += [f"v_accvgpr_read_b32 v{tm}, a{b+2*j}", f"v_accvgpr_read_b32 v{tm+1}, a{b+2*j+1}",
                      f"v_cvt_pk_bf16_f32 v{d+j}, v{tm}, v{tm+1}"]
    return r
E16 = [[]]*16
def sp(l, lo, hi, n): return spread(l, lo, hi, n) if l else [[]]*n
def upto(it, extra=0):
    return max(0, stream.index(it) + 1 + extra - nxt[0])
WREG = lambda i: {15: 192, 2: 192}.get(i, 128 + 16*(i & 1))
LA = OPT.get("la", 4)
hx, hw = [], []
for it in S0:
    for f in issue(upto(it, OPT.get("la0", 3))): g.run(f)
    g.run(wait(it))
    if it[0] == "W":
        for f in rdW(it, WREG(it[1])): g.run(f)
        hw.append(it[1]); new = [(bt, it[1]) for bt in hx]
    elif it[0] == "X":
        for f in rdX(it, 16*it[2]): g.run(f)
        hx.append(it[2]); new = [(it[2], w) for w in hw]
    else: new = []
    if it == S0[-1]: cons = [it]; break
    e("s_waitcnt lgkmcnt(0)"); stamp(); rel(it)
    for bt, w in new:
        for t_ in range(4): e(mfma(R(qacc[bt,t_],16), A(WREG(w)+4*t_), A(16*bt+4*w), w == 0))
for s in range(2, 14):
    st, ks = s // 4, s % 4
    e("s_waitcnt lgkmcnt(0)"); stamp(); rel(*cons)
    mf = [mfma(R(qacc[bt,t],16), A(WREG(s)+4*t), A(64*(st&1)+16*bt+4*ks), s == 0) for bt in BT for t in range(4)]
    if s == 0: mf = ["s_nop 0"] * 12 + mf[12:]
    if s == 12:
        for r in range(4): e(f"v_xor_b32 v{18+r}, s40, v{18+r}")
    if s == 8: e("buffer_load_dword v30, off, s[64:67], s79 sc1"); g.last["NON"] = g.vm
    if s == 12:
        g.run(wait("NON"))
        for l in ["v_readfirstlane_b32 s83, v30", "s_cmp_lg_u32 s83, 0", "s_cbranch_scc1 L_gotn", "s_mov_b32 s82, 0"]: e(l)
        g.raw("L_spinn:")
        for l in ["s_sleep 8", "buffer_load_dword v30, off, s[64:67], s79 sc1", "s_add_u32 s82, s82, 1", "s_waitcnt vmcnt(0)",
                  "v_readfirstlane_b32 s83, v30", "s_cmp_lg_u32 s83, 0", "s_cbranch_scc1 L_gotn",
                  "s_cmp_lt_u32 s82, 0x4000", "s_cbranch_scc1 L_spinn"]: g.raw("    " + l)
        g.raw("L_gotn:")
    if EB and B0 <= s < B0 + NB:
        e(f"s_cmp_lg_u32 s71, {s-B0}"); e(f"s_cbranch_scc1 L_nb{s}")
        v0 = g.vm
        for i in range(EB):
            for f in item_ops(("O",i)): g.run(f)
            g.last["O",i] = v0
        g.vm = v0; bpos.append(v0); g.raw(f"L_nb{s}:")
    cons = list(CONS[s])
    n = min(max(upto(c, LA) for c in cons), upto(("W",15)))
    if n == 0 or nxt[0] + n > stream.index(("W",15)): n = max(n, min(OPT.get("opace",2), upto(VI[3])))
    dm = issue(max(min(n, OPT['maxissue']), max(upto(c) for c in cons)))
    rd = []
    for it in cons:
        if it == cons[0]: rd.append(wait(*cons))
        if it[0] == "W": rd += rdW(it, WREG(it[1]))
        elif it[0] == "X": rd += rdX(it, 64*(it[1]&1)+16*it[2])
    plans = [sp(dm, 0, 8, 16), sp(rd, 8 if len(rd) < 16 else 6, 14, 16)]
    block(mf, *plans)
SOWN = qacc[2, 0][1]
sacc = {1: ("a",64), 2: ("a",80), 3: ("a",96), 0: ("v",SOWN)}
ex = {}
def wrpart(bt, src):
    def first():
        ex[bt] = g.free.pop(0)
    return [first] + [lazy(lambda q=q: f"ds_write_b128 v28, {A(src+4*q)} offset:{ex[bt]*4096+q*1024}") for q in range(4)]
g.run(wait(("K",0),("K",1))); e("s_barrier")
cv = []
for n in range(8):
    e("s_waitcnt lgkmcnt(0)"); stamp(); rel(*cons); cons = []
    bt = BT[n & 3]; plans = []
    if n < 4: mf = [mfma(R(qacc[bt,t],16), A(WREG(s)+4*t), A(64+16*bt+4*(s&3)), False) for s in (14,15) for t in range(4)]
    else: mf = [mfma(R(sacc[bt],16), A(KREG[bt]+8*t+4*m), V(qb[bt,t]+4*m), t == 0 and m == 0) for t in range(4) for m in range(2)]
    if 1 <= n <= 4: cv += cvts(BT[n-1])
    q = {1: 24, 2: 32, 3: 32, 4: 32, 5: 20, 6: 20}.get(n, 0)
    if q: plans.append(sp(cv[:q], 2 if n == 1 else 0, 8, 8)); cv = cv[q:]
    if n in (0, 1): plans.append(sp(rdK(BT[n]), 0, 6, 8))
    if n in (5, 6): plans.append(sp(rdK(BT[n-3]), 0, 6, 8))
    if n > 4: plans.append(sp(wrpart(BT[n-5], sacc[BT[n-5]][1]), 3, 7, 8))
    if n in (2, 4): cons = [("O",2-n//2)]; plans.append(sp([wait(*cons)] + rdO(cons[0],160-8*n), 1, 7, 8))
    if n in (3, 7):
        cons = VI[:2] if n == 3 else VI[2:]
        plans.append(sp([wait(*cons)] + rdX(cons[0], VREG+32*cons[0][1]) + rdX(cons[1], VREG+32*cons[0][1]+16), 2, 7, 8))
    dm = issue(2 if n < 3 else 1, reserve={3: 0, 4: 2, 5: 3, 6: 2, 7: 1}.get(n, 0) if upto(VI[3]) == 0 else 0)
    plans.append(sp(dm, 0, 8, 8))
    block(mf, *plans)
assert not cv
e("s_waitcnt lgkmcnt(0)")
e("s_barrier"); rel(("K",0),("K",1))
T0 = 208
sm1 = []
for bt in (1,2,3):
    sm1.append(f"v_add_u32 v{bt}, s{40+bt}, v28")
    sm1 += [f"ds_read_b128 {V(T0+16*(bt-1)+4*q)}, v{bt} offset:{ex[bt]*4096+q*1024}" for q in range(4)]
S = SOWN
sm = ["s_waitcnt lgkmcnt(0)"]
for j in range(16): sm.append(f"v_add_f32 v{T0+j}, v{T0+j}, v{T0+16+j}")
for j in range(16): sm.append(f"v_add_f32 v{S+j}, v{S+j}, v{T0+32+j}")
for j in range(16): sm.append(f"v_add_f32 v{S+j}, v{S+j}, v{T0+j}")
sm += [f"v_max3_f32 v1, v{S}, v{S+1}, v{S+2}", f"v_max3_f32 v2, v{S+3}, v{S+4}, v{S+5}"]
for j in range(6,16,4):
    sm.append(f"v_max3_f32 v1, v1, v{S+j}, v{S+j+1}")
    if j+2 < 16: sm.append(f"v_max3_f32 v2, v2, v{S+j+2}, v{S+j+3}")
sm += ["v_max_f32 v1, v1, v2", "v_mov_b32 v2, v1", "v_permlane32_swap_b32 v1, v2", "v_max_f32 v1, v1, v2", "v_mul_f32 v1, s48, v1"]
for j in range(16): sm.append(f"v_fma_f32 v{S+j}, v{S+j}, s48, -v1")
for j in range(16): sm.append(f"v_exp_f32 v{S+j}, v{S+j}")
sm += [f"v_add_f32 v1, v{S}, v{S+1}", f"v_add_f32 v2, v{S+2}, v{S+3}"]
for j in range(4,16,2): sm += [f"v_add_f32 v1, v1, v{S+j}", f"v_add_f32 v2, v2, v{S+j+1}"]
sm += ["v_add_f32 v1, v1, v2", "v_mov_b32 v2, v1", "v_permlane32_swap_b32 v1, v2", "v_add_f32 v1, v1, v2", "v_rcp_f32 v1, v1",
       "v_lshlrev_b32 v3, 4, v0"]
for j in range(16): sm.append(f"v_mul_f32 v{S+j}, v{S+j}, v1")
for j in range(8): sm.append(f"v_cvt_pk_bf16_f32 v{S+j}, v{S+2*j}, v{S+2*j+1}")
def pst(m):
    def f():
        e(f"buffer_store_dwordx4 {V(S+4*m)}, v3, s[28:31], s46 offen offset:{m*1024} sc1"); g.last["PST"] = g.vm
    return f
sm += [pst(0), pst(1)]

ub = {0:(96,128), 1:(160,32), 2:(192,224), 3:(96,128), 4:(160,32), 5:(192,224), 6:(64,128), 7:(224,32)}
ustore = {0:("a",64), 1:("a",96), 2:("a",0)}
def utile(h, tt): return ub[h][tt>>1] + 16*(tt&1)
def ucvt(h):
    r = []; d = ub[h][0]
    for tt in range(4):
        b = utile(h, tt)
        for j in range(8):
            r.append(f"v_cvt_pk_bf16_f32 v{d+8*tt+j}, v{b+2*j}, v{b+2*j+1}")
            if h in ustore: r.append(f"v_accvgpr_write_b32 a{ustore[h][1]+8*tt+j}, v{d+8*tt+j}")
    if h not in ustore: ustore[h] = ("v", d)
    return r
NSM = OPT.get("nsm", 4)
smparts = [sm[i*len(sm)//NSM:(i+1)*len(sm)//NSM] for i in range(NSM)]
pend_cvt = []; ndone = 0
for s in range(16):
    h, half = s // 2, s % 2
    e("s_waitcnt lgkmcnt(0)"); stamp(); rel(*cons)
    if s == NSM + OPT.get('sig',1):
        g.run(wait("PST")); e("s_barrier")
        for bt in (1,2,3): g.free.append(ex[bt])
        for l in ["s_cmp_lg_u32 s68, 0", "s_cbranch_scc1 L_nosig", "s_mov_b64 exec, 1", "v_mov_b32 v1, s83"]: e(l)
        g.raw("    buffer_store_dword v1, off, s[28:31], s44 sc1"); e("s_mov_b64 exec, -1"); g.raw("L_nosig:"); e("s_nop 3")
        pass
    if s == OPT['pollstep']:
        e("v_and_b32 v3, 7, v0"); e("v_lshlrev_b32 v3, 2, v3"); e("buffer_load_dword v2, v3, s[28:31], s45 offen sc1"); g.last["POLL"] = g.vm
    if s == OPT['pollstep'] + 2:
        g.run(wait("POLL"))
        for l in ["v_cmp_ne_u32 vcc, s83, v2", "s_nop 1", "s_cmp_eq_u64 vcc, 0", "s_cbranch_scc1 L_ready", "s_mov_b32 s82, 0"]: e(l)
        g.raw("L_spin:")
        for l in ["s_sleep 8", "buffer_load_dword v2, v3, s[28:31], s45 offen sc1", "s_add_u32 s82, s82, 1", "s_waitcnt vmcnt(0)",
                  "v_cmp_ne_u32 vcc, s83, v2", "s_nop 1", "s_cmp_eq_u64 vcc, 0", "s_cbranch_scc1 L_ready",
                  "s_cmp_lt_u32 s82, 0x4000", "s_cbranch_scc1 L_spin"]: g.raw("    " + l)
        g.raw("L_ready:"); gate["P"] = True
        for l in ["s_lshl_b32 s81, s69, 11", "v_add_u32 v18, s81, v28", "v_xor_b32 v19, 0x800, v18", "v_lshl_add_u32 v17, v0, 4, s57"]: e(l)
        pass
    wb = 128 + 32 * (s & 1)
    mf = [mfma(V(utile(h,2*b+nt),16), A(VREG+32*b+16*half+4*k), A(wb+8*k+4*nt), half == 0 and k == 0)
          for k in range(4) for b in range(2) for nt in range(2)]
    dm = issue(3 if s < OPT.get('u3',2) else 2)
    wn = 128 + 32 * ((s + 1) & 1)
    if s < 15:
        cons = [("O",2*s+2),("O",2*s+3)]; rd = [wait(*cons)] + rdO(cons[0], wn) + rdO(cons[1], wn+16)
    else:
        cons = [("P",0),("P",1)]; rd = [wait(*cons)] + rdP(cons[0], wn) + rdP(cons[1], wn+16)
    plans = [spread(dm, 0, 8, 16) if dm else [[]]*16, spread(rd, 7, 14, 16)]
    if half == 0 and h > 0: pend_cvt += ucvt(h-1)
    if pend_cvt and s >= NSM:
        n = 40 if s < 15 else 99
        plans.append(spread(pend_cvt[:n], 3 if half == 0 else 0, 16, 16)); ndone += len(pend_cvt[:n]); pend_cvt = pend_cvt[n:]
    assert ndone >= {5: 64, 7: 128, 9: 192, 11: 224, 13: 288, 15: 320}.get(s, 0)
    if s == 0: plans = [spread(sm1, 0, 3, 16)] + plans + [spread(smparts[0], 5, 16, 16)]
    elif s < NSM: plans.append(spread(smparts[s], 0, 16, 16))
    block(mf, *plans)
pass
OOWN = 128
oacc = {0: ("v",OOWN), 1: ("a",192), 2: ("a",208), 3: ("a",224)}
PB = [128, 160, 128, 32]
def omf(h, tt, m):
    u = ustore[h]
    return mfma(R(oacc[tt],16), R((u[0],u[1]+8*tt+4*m),4), A(PB[h//2]+16*(h&1)+8*(tt>>1)+4*m), h == 0 and m == 0)
for s in range(2):
    e("s_waitcnt lgkmcnt(0)"); stamp(); rel(*cons)
    plans = []
    if s == 0: plans.append(spread(ucvt(7), 3, 16, 16))
    mf = [omf(2*s+hh, tt, m) for hh in range(2) for m in range(2) for tt in range(s, 4)]
    nn = len(mf)
    plans.append(sp(issue(99), 0, 8, 16))
    cons = [("P",i) for i in (range(2,4) if s == 0 else range(4,8))]
    rd = [wait(*cons)]
    for it in cons: rd += rdP(it, PB[it[1]//2]+16*(it[1]&1))
    plans.append(spread(rd, nn - 10, nn - 2, 16))
    block(mf, *plans)
e("s_waitcnt lgkmcnt(0)"); stamp(); rel(*cons)
T0 = 32
mf = [omf(h, tt, m) for tt in (1,2,3) for h in range(4,8) for m in range(2)] + [omf(h, 0, m) for h in range(2,8) for m in range(2)]
adr = ["v_and_b32 v4, 31, v0", "v_lshrrev_b32 v5, 5, v0", "v_lshlrev_b32 v4, 12, v4", "v_lshl_add_u32 v4, v5, 5, v4"]
adr += [f"v_add_u32 v{tt}, s{40+tt}, v28" for tt in (1,2,3)]
plans = [spread(adr, 0, 7, 36), spread(wrpart(1, oacc[1][1]), 18, 21, 36), spread(wrpart(2, oacc[2][1]), 22, 25, 36)]
TB = {1: 32, 2: 48, 3: 144}
p = [[] for _ in range(36)]; p[24] = ["s_nop 3"]; p[25] = ["s_nop 2"] + wrpart(3, oacc[3][1]); p[28] = ["s_waitcnt lgkmcnt(0)", "s_barrier"] + \
    [lazy(lambda tt=tt, q=q: f"ds_read_b128 {V(TB[tt]+4*q)}, v{tt} offset:{ex[tt]*4096+q*1024}") for tt in (1,2,3) for q in range(4)]
p[35] = ["s_waitcnt lgkmcnt(0)", stamp] + [f"v_pk_add_f32 {V(32+j,2)}, {V(32+j,2)}, {V(o+j,2)}" for o in (48, 144) for j in range(0,16,2)]
plans.append(p)
block(mf, *plans)
S = OOWN
for j in range(0,16,2): e(f"v_pk_add_f32 {V(S+j,2)}, {V(S+j,2)}, {V(32+j,2)}")
for j in range(8): e(f"v_cvt_pk_bf16_f32 v{S+j}, v{S+2*j}, v{S+2*j+1}")
for m in range(2): e(f"buffer_store_dwordx4 {V(S+4*m)}, v4, s[32:35], s47 offen offset:{16*m}" + {0:"",1:" sc1",2:" nt",3:" sc0 sc1"}[OPT.get("of",0)])
if OPT['stamp']:
    e("s_waitcnt vmcnt(0) lgkmcnt(0)"); stamp(); e("s_memrealtime s[38:39]"); e("s_waitcnt lgkmcnt(0)"); stamp()
    for l in ["v_writelane_b32 v31, s86, 1", "v_writelane_b32 v31, s88, 2", "v_writelane_b32 v31, s100, 0", "v_writelane_b32 v31, s38, 63",
              f"s_mov_b32 s81, {nst[0]-1}", "v_writelane_b32 v31, s81, 62",
              "s_lshl_b32 s82, s2, 2", "s_add_u32 s82, s82, s68", "s_lshl_b32 s82, s82, 8", "s_add_u32 s82, s82, 0x280000", "s_mov_b32 s30, 0x2c0000",
              "v_lshlrev_b32 v1, 2, v0", "buffer_store_dword v31, v1, s[28:31], s82 offen"]: e(l)
assert nxt[0] == len(stream)

hdr = open(f"cdna_kernels/{NAME}.s.ref").read().split("; Override launch")[0]
txt = hdr + f"""; @launch grid=(256,1,1) block=(256,1,1) lds=163840
.amdgcn_target "amdgcn-amd-amdhsa--gfx950"
.text
.globl {NAME}_kernel
.p2align 8
.type {NAME}_kernel,@function
{NAME}_kernel:
""" + "\n".join(g.out) + f"""
L_end:
    s_endpgm
.section .rodata,"a"
.p2align 6
.amdhsa_kernel {NAME}_kernel
  .amdhsa_next_free_vgpr 512
  .amdhsa_next_free_sgpr 102
  .amdhsa_accum_offset 256
  .amdhsa_group_segment_fixed_size 0
  .amdhsa_kernarg_size 104
  .amdhsa_user_sgpr_count 2
  .amdhsa_user_sgpr_kernarg_segment_ptr 1
  .amdhsa_system_sgpr_workgroup_id_x 1
.end_amdhsa_kernel
"""
open(sys.argv[1], "w").write(txt)
```
